```python
import torch

def _softmax(x, axis=-1):
    return torch.softmax(x, dim=axis)

def _gelu(x):
    return torch.nn.functional.gelu(x, approximate='tanh')

def _silu(x):
    return torch.nn.functional.silu(x)

def _sigmoid(x):
    return torch.sigmoid(x)

def _layernorm(x, axis=-1, eps=1e-05):
    m = x.mean(dim=axis, keepdim=True)
    v = x.var(dim=axis, keepdim=True, unbiased=False)
    return (x - m) / torch.sqrt(v + eps)

def _scatter_add(tgt, idx, src, axis=0):
    return tgt.clone().index_add_(axis, idx, src)

def _segment_sum(src, seg, n):
    out = torch.zeros((n,) + src.shape[1:], dtype=src.dtype)
    return out.index_add_(0, seg, src)

def _pad(x, pw):
    flat = tuple((v for pair in reversed(pw) for v in pair))
    return torch.nn.functional.pad(x, flat)
kernel_name = 'adaLN_cond__linear_kernel_hedgehog__mixer_gmlp__prompt'

def setup_inputs():

    _w = lambda a: (lambda t: t.to(torch.bfloat16) if t.is_floating_point() else t)(torch.as_tensor(a))

    def _A_setup():
        B, S, D, H = (1, 2048, 448, 16)
        Dh = D // H
        return {'x': _w((lambda *s: torch.randn(*s, dtype=torch.bfloat16) * 0.05)(B, S, D)), 'wqkv': _w((lambda *s: torch.randn(*s, dtype=torch.bfloat16) * 0.4)(D, 3 * D)), 'w_phi': _w((lambda *s: torch.randn(*s, dtype=torch.bfloat16) * 0.4)(H, Dh, Dh) * Dh ** (-0.5)), 'wo': _w((lambda *s: torch.randn(*s, dtype=torch.bfloat16) * 0.1)(D, D))}
    _A_in = _A_setup()

    def _B_setup():
        B, S, D, F = (1, 2048, 448, 1792)
        Fh = F // 2
        return {'x': _w((lambda *s: torch.randn(*s, dtype=torch.bfloat16) * 0.05)(B, S, D)), 'w_in': _w((lambda *s: torch.randn(*s, dtype=torch.bfloat16) * 0.4)(D, 2 * Fh)), 'w_sp': _w(0.01 * (lambda *s: torch.randn(*s, dtype=torch.bfloat16) * 0.4)(S, S)), 'b_sp': _w(1.0 + 0.01 * (lambda *s: torch.randn(*s, dtype=torch.bfloat16) * 0.05)(S)), 'w_out': _w((lambda *s: torch.randn(*s, dtype=torch.bfloat16) * 0.05)(Fh, D))}
    _B_in = _B_setup()
    return {'A_x': _A_in['x'], 'A_wqkv': _A_in['wqkv'], 'A_w_phi': _A_in['w_phi'], 'A_wo': _A_in['wo'], 'B_x': _B_in['x'], 'B_w_in': _B_in['w_in'], 'B_w_sp': _B_in['w_sp'], 'B_b_sp': _B_in['b_sp'], 'B_w_out': _B_in['w_out'], 'c': _w((lambda *s: torch.randn(*s, dtype=torch.bfloat16) * 0.2)(1, 448) * 8.0), 'w_mod': _w((lambda *s: torch.randn(*s, dtype=torch.bfloat16) * 0.2)(448, 6 * 448) * 448 ** (-0.5) * 8.0)}

def reference(A_x, A_wqkv, A_w_phi, A_wo, B_x, B_w_in, B_w_sp, B_b_sp, B_w_out, c, w_mod):

    def _A_ref(x, wqkv, w_phi, wo):
        B, S, D = x.shape
        H = 16
        Dh = D // H
        qkv = (lambda x, *d: x.permute(*d))((x @ wqkv).reshape(B, S, 3, H, Dh), 2, 0, 3, 1, 4)
        q, k, v = (qkv[0], qkv[1], qkv[2])
        pq = torch.einsum('bhsd,hdf->bhsf', q, w_phi)
        pk = torch.einsum('bhsd,hdf->bhsf', k, w_phi)
        phi_q = torch.concatenate([_softmax(pq, axis=-1), _softmax(-pq, axis=-1)], axis=-1)
        phi_k = torch.concatenate([_softmax(pk, axis=-1), _softmax(-pk, axis=-1)], axis=-1)
        kv = torch.einsum('bhsf,bhsd->bhfd', phi_k, v)
        z = torch.einsum('bhsf->bhf', phi_k)
        num = torch.einsum('bhqf,bhfd->bhqd', phi_q, kv)
        den = torch.einsum('bhqf,bhf->bhq', phi_q, z)[..., None] + 1e-06
        o = num / den
        return (lambda x, *d: x.permute(*d))(o, 0, 2, 1, 3).reshape(B, S, D) @ wo

    def _B_ref(x, w_in, w_sp, b_sp, w_out):
        B, S, D = x.shape
        F = w_in.shape[-1]
        Fh = F // 2
        z = _gelu(torch.einsum('bsd,df->bsf', x, w_in))
        z1 = z[..., :Fh].clone()
        z2 = _layernorm(z[..., Fh:], axis=-1)
        g = torch.einsum('ts,bsf->btf', w_sp, z2) + b_sp[None, :, None]
        return torch.einsum('bsf,fd->bsd', z1 * g, w_out)
    x = A_x
    mod = (_silu(c) @ w_mod).reshape(c.shape[0], 6, 1, -1)
    sa, ca, ga, sb, cb, gb = (mod[:, 0].clone(), mod[:, 1].clone(), mod[:, 2].clone(), mod[:, 3].clone(), mod[:, 4].clone(), mod[:, 5].clone())
    h = _layernorm(x, axis=-1) * (1 + ca) + sa
    x = x + ga * _A_ref(h, A_wqkv, A_w_phi, A_wo)
    h = _layernorm(x, axis=-1) * (1 + cb) + sb
    x = x + gb * _B_ref(h, B_w_in, B_w_sp, B_b_sp, B_w_out)
    return x
```

```python
import re

_REG = re.compile(r'(?<![\w.])([vas])(?:(\d+)|\[(\d+):(\d+)\])(?![\w])')


def regs_of(op):
    out = set()
    op = op.strip()
    for m in _REG.finditer(op):
        c = m.group(1)
        if m.group(2) is not None:
            out.add((c, int(m.group(2))))
        else:
            for i in range(int(m.group(3)), int(m.group(4)) + 1):
                out.add((c, i))
    if re.search(r'\bvcc(_lo|_hi)?\b', op):
        out.add(('x', 'vcc'))
    if re.search(r'\bexec(_lo|_hi)?\b', op):
        out.add(('x', 'exec'))
    if re.search(r'\bm0\b', op):
        out.add(('x', 'm0'))
    return out


def split_ops(s):
    ops, depth, cur = [], 0, ''
    for ch in s:
        if ch in '[(':
            depth += 1
        if ch in '])':
            depth -= 1
        if ch == ',' and depth == 0:
            ops.append(cur.strip())
            cur = ''
        else:
            cur += ch
    if cur.strip():
        ops.append(cur.strip())
    return ops


TRANS = ('v_exp_f32', 'v_log_f32', 'v_rcp_f32', 'v_rsq_f32', 'v_sqrt_f32', 'v_sin_f32', 'v_cos_f32')


class Ins:
    __slots__ = ('text', 'mn', 'kind', 'rd', 'wr', 'region', 'tok', 'srcC', 'srcAB', 'passes', 'data', 'lds',
                 'dpp', 'raw', 'dppsrc')

    def __init__(self, text, region):
        self.text = text
        self.region = region
        self.tok = None
        self.rd, self.wr = set(), set()
        self.srcC, self.srcAB, self.data, self.dppsrc = set(), set(), set(), set()
        self.passes = 0
        self.lds = False
        self.dpp = False
        self.raw = False
        t = text.split(';')[0].strip()
        if t.endswith(':') or t.startswith('.') or not t:
            self.mn, self.kind = t, 'pseudo'
            return
        sp = t.split(None, 1)
        mn = sp[0]
        self.mn = mn
        rest = sp[1] if len(sp) > 1 else ''
        ops = split_ops(rest)
        R = [regs_of(o) for o in ops]
        base = re.sub(r'_(e32|e64|dpp|sdwa)$', '', mn)
        if mn.startswith('v_mfma'):
            self.kind = 'mfma'
            self.wr = R[0]
            self.srcAB = R[1] | R[2]
            self.srcC = R[3]
            self.rd = self.srcAB | self.srcC
            self.passes = 8 if '32x32x16' in mn else 4
            assert '32x32x16' in mn or '16x16x32' in mn, mn
        elif mn.startswith('v_'):
            self.kind = 'trans' if base in TRANS else 'valu'
            self.dpp = mn.endswith('_dpp')
            if base.startswith('v_permlane'):
                self.kind = 'perm'
                self.wr = R[0] | R[1]
                self.rd = R[0] | R[1]
            elif base.startswith('v_cmp'):
                self.wr = R[0]
                self.rd = set().union(*R[1:])
            elif base in ('v_add_co_u32', 'v_addc_co_u32', 'v_sub_co_u32'):
                self.wr = R[0] | R[1]
                self.rd = set().union(*R[2:])
            else:
                self.wr = R[0]
                self.rd = set().union(*R[1:]) if len(R) > 1 else set()
                if base in ('v_fmac_f32', 'v_dot2c_f32_bf16', 'v_writelane_b32') or self.dpp:
                    self.rd |= R[0]
                if self.dpp:
                    self.dppsrc = R[1]
            if base in ('v_readfirstlane_b32', 'v_readlane_b32'):
                self.kind = 'rdlane'
        elif mn.startswith('ds_'):
            self.kind = 'ds'
            if mn.startswith('ds_read') or mn.startswith('ds_bpermute') or mn.startswith('ds_swizzle'):
                self.wr = R[0]
                self.rd = set().union(*R[1:])
            else:
                self.rd = set().union(*R)
                self.data = set().union(*R[1:])
        elif mn.startswith('buffer_') or mn.startswith('global_'):
            self.kind = 'vmem'
            self.lds = bool(re.search(r'\blds\b', rest)) or '_lds_' in mn
            if self.lds:
                self.rd = set().union(*R) | {('x', 'm0')}
            elif '_load' in mn:
                self.wr = R[0]
                self.rd = set().union(*R[1:])
                if 'd16' in mn:
                    self.rd |= set()
            elif mn.startswith('buffer_store'):
                self.rd = set().union(*R)
                self.data = R[0]
            elif mn.startswith('global_store'):
                self.rd = set().union(*R)
                self.data = R[1]
            else:
                raise ValueError(text)
        elif mn.startswith('s_load') or mn.startswith('s_buffer_load') or mn in ('s_memtime', 's_memrealtime'):
            self.kind = 'smem'
            self.wr = R[0]
            self.rd = set().union(*R[1:]) if len(R) > 1 else set()
        elif mn.startswith('s_'):
            self.kind = 'salu'
            if mn in ('s_waitcnt', 's_nop', 's_barrier', 's_sleep', 's_setprio', 's_endpgm', 's_branch') or \
                    mn.startswith('s_cbranch'):
                self.kind = 'sopp'
                if 'vcc' in mn:
                    self.rd = {('x', 'vcc')}
                if 'exec' in mn:
                    self.rd = {('x', 'exec')}
            elif mn.startswith('s_cmp') or mn.startswith('s_bitcmp'):
                self.rd = set().union(*R)
            else:
                self.wr = R[0]
                self.rd = set().union(*R[1:]) if len(R) > 1 else set()
                if 'saveexec' in mn:
                    self.wr |= {('x', 'exec')}
                if mn in ('s_addk_i32', 's_mulk_i32'):
                    self.rd |= R[0]
        else:
            raise ValueError('unknown instruction ' + text)

    def isvalu(self):
        return self.kind in ('valu', 'trans', 'perm', 'rdlane')

    def states(self):
        if self.kind == 'pseudo':
            return 0
        if self.mn == 's_nop':
            return int(self.text.split()[1]) + 1
        return 1


def is_prefix(a, b):
    return len(a) <= len(b) and b[:len(a)] == a


class K:
    def __init__(self):
        self.ins = []
        self.region = ()
        self.nreg = 0
        self.nlab = 0

    def __call__(self, text):
        last = None
        for line in text.split('\n'):
            line = line.strip()
            if not line:
                continue
            last = Ins(line, self.region)
            self.ins.append(last)
        return last

    def raw(self, text):
        for line in text.split('\n'):
            line = line.strip()
            if not line:
                continue
            i = Ins(line, self.region)
            i.raw = True
            self.ins.append(i)

    def _pseudo(self, name, tok=None):
        i = Ins('', self.region)
        i.mn = name
        i.tok = tok
        self.ins.append(i)

    def wait_vm(self, tok):
        self._pseudo('@waitvm', tok)

    def wait_vm0(self):
        self._pseudo('@waitvm0')

    def wait_lgkm0(self):
        self._pseudo('@waitlgkm0')

    def assume_vm0(self):
        self._pseudo('@vm0')

    def barrier(self):
        self._pseudo('@waitlgkm0')
        self('s_barrier')

    def label(self, base='L'):
        self.nlab += 1
        return f'{base}_{self.nlab}'

    def begin_if(self, branch_if_skip):
        lab = self.label('SK')
        self(f'{branch_if_skip} {lab}')
        self.nreg += 1
        self.region = self.region + (self.nreg,)
        self._pseudo('@enter')
        return lab

    def end_if(self, lab):
        self._pseudo('@leave')
        self.region = self.region[:-1]
        self(f'{lab}:')

    def pass_wait(self):
        out = []
        vm, lg = [], []
        stack = []

        def count_after(q, idx, region):
            return sum(1 for y in q[idx + 1:] if is_prefix(y.region, region))

        def emit_wait(region, nv=None, nl=None):
            parts = []
            if nv is not None:
                parts.append(f'vmcnt({min(nv, 63)})')
            if nl is not None:
                parts.append(f'lgkmcnt({min(nl, 15)})')
            out.append(Ins('s_waitcnt ' + ' '.join(parts), region))

        for i in self.ins:
            if i.kind == 'pseudo':
                if i.mn == '@waitvm':
                    if i.tok in vm:
                        idx = vm.index(i.tok)
                        emit_wait(i.region, nv=count_after(vm, idx, i.region))
                        del vm[:idx + 1]
                elif i.mn == '@waitvm0':
                    if vm:
                        emit_wait(i.region, nv=0)
                        vm.clear()
                elif i.mn == '@waitlgkm0':
                    if lg:
                        emit_wait(i.region, nl=0)
                        lg.clear()
                elif i.mn == '@vm0':
                    vm.clear()
                elif i.mn == '@enter':
                    stack.append((list(vm), list(lg)))
                elif i.mn == '@leave':
                    svm, slg = stack.pop()
                    vm[:] = svm + [y for y in vm if y not in svm]
                    lg[:] = slg + [y for y in lg if y not in slg]
                else:
                    out.append(i)
                continue
            if i.raw:
                out.append(i)
                continue
            touch = i.rd | i.wr
            nv = nl = None
            idx = -1
            for n, y in enumerate(vm):
                if y.wr & touch:
                    if i.kind == 'vmem' and not (y.wr & i.rd):
                        continue
                    idx = n
            if idx >= 0:
                nv = count_after(vm, idx, i.region)
                del vm[:idx + 1]
            idx = -1
            for n, y in enumerate(lg):
                if y.wr & touch:
                    if i.kind == 'ds' and y.kind == 'ds' and not (y.wr & i.rd):
                        continue
                    idx = n
            if idx >= 0:
                if any(y.kind == 'smem' for y in lg):
                    nl = 0
                    lg.clear()
                else:
                    nl = count_after(lg, idx, i.region)
                    del lg[:idx + 1]
            if nv is not None or nl is not None:
                emit_wait(i.region, nv, nl)
            if i.mn == 's_waitcnt':
                m = re.search(r'vmcnt\((\d+)\)', i.text)
                if m and int(m.group(1)) == 0:
                    vm.clear()
                m = re.search(r'lgkmcnt\((\d+)\)', i.text)
                if m and int(m.group(1)) == 0:
                    lg.clear()
            out.append(i)
            if i.kind == 'vmem':
                vm.append(i)
            elif i.kind in ('ds', 'smem'):
                lg.append(i)
        self.ins = out

    @staticmethod
    def need(p, c):
        n = 0
        V = lambda s: {r for r in s if r[0] in 'va'}
        S = lambda s: {r for r in s if r[0] == 's' or r == ('x', 'vcc')}
        if p.isvalu():
            pw = V(p.wr)
            if c.kind == 'mfma' and pw & c.rd:
                n = max(n, 2)
            if c.kind == 'perm' and pw & c.rd:
                n = max(n, 2)
            if c.dpp and pw & c.dppsrc:
                n = max(n, 2)
            if c.kind == 'rdlane' and pw & c.rd:
                n = max(n, 1)
            if p.kind == 'trans' and c.isvalu() and c.kind != 'trans' and pw & c.rd:
                n = max(n, 1)
            if p.kind == 'trans' and c.kind in ('trans', 'vmem', 'ds') and pw & c.rd:
                n = max(n, 1)
            sw = S(p.wr)
            if sw:
                if c.isvalu() and sw & c.rd:
                    n = max(n, 4 if c.kind == 'rdlane' else 2)
                if c.kind == 'vmem' and sw & c.rd:
                    n = max(n, 5)
                if c.kind in ('salu', 'smem') and sw & c.rd:
                    n = max(n, 1)
        if p.kind == 'mfma':
            big = 12 if p.passes == 8 else 8
            if c.kind == 'mfma':
                if p.wr & c.srcAB:
                    n = max(n, big)
                if p.wr & c.srcC:
                    if not (p.wr == c.srcC and p.passes == c.passes):
                        n = max(n, 10 if p.passes == 8 else 6)
                elif p.wr & c.wr:
                    n = max(n, big)
            elif c.isvalu() or c.kind in ('vmem', 'ds'):
                if p.wr & (c.rd | c.wr):
                    n = max(n, big)
                if p.srcC & c.wr:
                    n = max(n, 7 if p.passes == 8 else 3)
        if p.kind == 'salu' and ('x', 'm0') in p.wr and c.kind == 'vmem' and c.lds:
            n = max(n, 1)
        if p.kind == 'vmem' and len(p.data) >= 3 and p.data & c.wr:
            n = max(n, 2)
        if p.kind == 'ds' and len(p.data) >= 3 and p.data & c.wr:
            n = max(n, 2)
        return n

    def pass_hazard(self):
        out = []
        for c in self.ins:
            if c.kind != 'pseudo':
                dist = 0
                pad = 0
                seen = 0
                for p in reversed(out):
                    if p.kind == 'pseudo':
                        continue
                    n = self.need(p, c)
                    if n > dist:
                        pad = max(pad, n - dist)
                    if is_prefix(p.region, c.region):
                        dist += p.states()
                    seen += 1
                    if dist >= 13 or seen > 400:
                        break
                if pad:
                    out.append(Ins(f's_nop {pad - 1}', c.region))
            out.append(c)
        self.ins = out

    def text(self):
        lines = []
        for i in self.ins:
            if i.kind == 'pseudo' and not i.text:
                continue
            lines.append(i.text if i.text.endswith(':') or i.text.startswith('.') else '    ' + i.text)
        return '\n'.join(lines) + '\n'

    def finish(self):
        self.pass_wait()
        self.pass_hazard()
        return self.text()


def vr(a, n=1, c='v'):
    return f'{c}{a}' if n == 1 else f'{c}[{a}:{a + n - 1}]'


def ar(a, n=1):
    return vr(a, n, 'a')


def sr(a, n=1):
    return vr(a, n, 's')
```

```python
import sys, os, struct, math
sys.path.insert(0, os.path.dirname(os.path.abspath(__file__)))
from emit import K, vr, ar, sr

NAME = 'adaLN_cond__linear_kernel_hedgehog__mixer_gmlp__prompt'
PROF = int(os.environ.get('PROF', '0'))
STOP = int(os.environ.get('STOP', '99'))

WS_MOD = 0x1000
FLC, FLD, FLG = 0x4000, 0x5000, 0x6000
FGB, FGC, FGD, FGF, FGG = 0x10000, 0x18000, 0x20000, 0x28000, 0x30000
WS_KVP = 0x100000
WS_O = 0x200000
WS_Y = 0x400000
WS_ST1 = 0x600000
WS_ST2 = 0x680000
WS_Z2 = 0x800000
WS_Z1 = 0xC00000
WS_U = 0x1000000
WS_DBG = 0x1400000
WS_SIZE = 0x2000000

XS_STRIDE = 912
L_WK = 120832
L_MODW = 149504
L_SILU = 116736
L_VEC = 116736
L_A = 0
L_B = 58368
L_WV = L_B
L_WQ = L_B + 28672
L_WPHI = 162048
L_VECP = 115712
L_UV = 119296
L_KVF = 120320
L_SLOT = 131072
PHI_STRIDE = 136
VF_OFF = 4352
LDS_BYTES = 163840

SX, SWQKV, SWPHI, SWO, SWIN, SWSP, SBSP, SWOUT, SC, SWMOD, SOUT, SWS = [4 + 4 * i for i in range(12)]
sW, sXCD, sI, sRB, sH, sTB, sCB, sTAG = range(52, 60)
sT0, sT1, sT2, sT3, sT4, sT5 = range(60, 66)
sCNT = 66
sSLOT = 67
sHI = 68
sEX = 70
sC0 = 72
sTS = 88
sPB = 90


def f2u(x):
    return struct.unpack('<I', struct.pack('<f', x))[0]


def srd(b):
    return f's[{b}:{b + 3}]'


k = K()
nstamp = [0]
stamp_names = []


def stamp(name):
    if not PROF:
        return
    i = nstamp[0]
    nstamp[0] += 1
    stamp_names.append(name)
    k(f's_memtime s[{sTS}:{sTS + 1}]')
    k.wait_lgkm0()
    k(f'v_writelane_b32 v255, s{sTS}, {i}')


def weave(main, side, every, start=0):
    side = list(side)
    n = 0
    for idx, m in enumerate(main):
        (m() if callable(m) else k(m))
        if idx >= start:
            n += 1
            if n == every and side:
                s_ = side.pop(0)
                (s_() if callable(s_) else k(s_))
                n = 0
    for s_ in side:
        (s_() if callable(s_) else k(s_))


def run(items):
    for m in items:
        (m() if callable(m) else k(m))


def poll(vtmp, voffL, soffL, voffG, soffG):
    done = k.label('PD')
    k(f's_mov_b32 s{sCNT}, 0')
    k.wait_vm0()
    if voffL is not None:
        l1 = k.label('PL')
        k.raw(f'''{l1}:
            buffer_load_dword v{vtmp}, v{voffL}, {srd(SWS)}, s{soffL} offen sc1
            s_add_u32 s{sCNT}, s{sCNT}, 1
            s_waitcnt vmcnt(0)
            v_cmp_ne_u32 vcc, s{sTAG}, v{vtmp}
            s_cbranch_vccz {done}
            s_cmp_lt_u32 s{sCNT}, 64
            s_cbranch_scc1 {l1}''')
    l2 = k.label('PG')
    k.raw(f'''{l2}:
        buffer_load_dword v{vtmp}, v{voffG}, {srd(SWS)}, s{soffG} offen sc1
        s_add_u32 s{sCNT}, s{sCNT}, 1
        s_waitcnt vmcnt(0)
        v_cmp_ne_u32 vcc, s{sTAG}, v{vtmp}
        s_cbranch_vccz {done}
        s_cmp_lt_u32 s{sCNT}, 0x40000
        s_cbranch_scc1 {l2}
        {done}:''')
    k.assume_vm0()


def publish(last_store, vtmp, soffL, soffG):
    k.wait_vm(last_store)
    k.barrier()
    k(f's_cmp_eq_u32 s{sW}, 0')
    lab = k.begin_if('s_cbranch_scc0')
    k(f'v_mov_b32 v{vtmp}, s{sTAG}')
    k('s_mov_b64 exec, 1')
    if soffL is not None:
        k(f'buffer_store_dword v{vtmp}, off, {srd(SWS)}, s{soffL}')
    k(f'buffer_store_dword v{vtmp}, off, {srd(SWS)}, s{soffG} sc1')
    k('s_mov_b64 exec, -1')
    k.end_if(lab)


def finish_early(n):
    if STOP == n:
        k('s_branch L_END')


def unpack(dlo, dhi, src):
    k(f'v_lshlrev_b32 v{dlo}, 16, v{src}')
    k(f'v_and_b32 v{dhi}, 0xffff0000, v{src}')


k('s_cmp_ge_u32 s2, 256')
k('s_cbranch_scc1 L_EXIT')
for (b, off) in ((SC, 72), (SWMOD, 80), (SX, 0), (SWQKV, 8), (SWS, 104), (SWPHI, 16), (SWO, 24), (SWIN, 40),
                 (SWSP, 48), (SBSP, 56), (SWOUT, 64), (SOUT, 88)):
    k(f's_load_dwordx2 s[{b}:{b + 1}], s[0:1], {off}')
k('v_lshrrev_b32 v1, 6, v0')
k('v_and_b32 v0, 63, v0')
k(f'v_readfirstlane_b32 s{sW}, v1')
for (b, size) in ((SC, 896), (SWMOD, 448 * 5376), (SX, 2048 * 896), (SWQKV, 448 * 2688), (SWS, WS_SIZE),
                  (SWPHI, 16 * 1568), (SWO, 448 * 896), (SWIN, 448 * 3584), (SWSP, 2048 * 4096), (SBSP, 4096),
                  (SWOUT, 896 * 896), (SOUT, 2048 * 896)):
    k(f's_mov_b32 s{b + 2}, {size}')
    k(f's_mov_b32 s{b + 3}, 0x20000')
k(f's_and_b32 s{sXCD}, s2, 7')
k(f's_lshr_b32 s{sI}, s2, 3')
k(f's_lshr_b32 s{sT0}, s{sI}, 4')
k(f's_lshl_b32 s{sRB}, s{sXCD}, 1')
k(f's_add_u32 s{sRB}, s{sRB}, s{sT0}')
k(f's_and_b32 s{sH}, s{sI}, 15')
k(f's_lshr_b32 s{sT0}, s{sI}, 3')
k(f's_lshl_b32 s{sTB}, s{sXCD}, 2')
k(f's_add_u32 s{sTB}, s{sTB}, s{sT0}')
k(f's_and_b32 s{sCB}, s{sI}, 7')
k(f's_lshl_b32 s{sSLOT}, s{sW}, 13')
k(f's_add_u32 s{sSLOT}, s{sSLOT}, {L_SLOT}')
k(f's_mov_b32 s{sHI}, 0')
k(f's_mov_b32 s{sHI + 1}, -1')
if PROF:
    k('v_mov_b32 v255, 0')
k.wait_lgkm0()
k(f's_load_dword s{sTAG}, s[{SWS}:{SWS + 1}], 0')
stamp('entry')

k(f's_cmp_eq_u32 s{sW}, 0')
k('s_cbranch_scc1 L_W0')
k.raw(f'''
    s_getpc_b64 s[{sT2}:{sT3}]
L_PC:
    s_mul_i32 s{sT0}, s{sI}, 3
    s_add_u32 s{sT0}, s{sT0}, s{sW}
    s_sub_u32 s{sT0}, s{sT0}, 1
    s_lshl_b32 s{sT0}, s{sT0}, 10
    v_lshl_add_u32 v2, v0, 4, s{sT0}
    v_min_u32 v2, L_CODE_END-L_PC-16, v2
    global_load_dwordx4 v[4:7], v2, s[{sT2}:{sT3}]
    v_lshlrev_b32 v1, 4, v0
    s_mul_i32 s{sT4}, s{sRB}, {128 * 896}
    s_sub_u32 s{sT0}, s{sW}, 1
    s_lshl_b32 s{sT5}, s{sH}, 3
    s_mov_b32 exec_lo, -1
    s_mov_b32 exec_hi, 0xffffff
L_XROW:
    s_add_u32 s{sT1}, s{sT0}, s{sT5}
    s_and_b32 s{sT1}, s{sT1}, 127
    s_mul_i32 m0, s{sT1}, {XS_STRIDE}
    s_mul_i32 s{sT1}, s{sT1}, 896
    s_add_u32 s{sT1}, s{sT1}, s{sT4}
    s_add_u32 s{sT0}, s{sT0}, 3
    buffer_load_dwordx4 v1, {srd(SX)}, s{sT1} offen lds
    s_cmp_lt_u32 s{sT0}, 128
    s_cbranch_scc1 L_XROW
    s_mov_b64 exec, -1
    v_lshrrev_b32 v2, 2, v0
    v_mul_u32_u24 v2, 2688, v2
    v_and_b32 v3, 3, v0
    v_lshl_add_u32 v2, v3, 4, v2
    s_mul_i32 s{sT4}, s{sH}, 56
    s_add_u32 s{sT4}, s{sT4}, 896
    s_sub_u32 s{sT0}, s{sW}, 1
L_WKROW:
    s_lshl_b32 s{sT1}, s{sT0}, 10
    s_add_u32 m0, s{sT1}, {L_WK}
    s_mul_i32 s{sT1}, s{sT0}, {16 * 2688}
    s_add_u32 s{sT1}, s{sT1}, s{sT4}
    s_add_u32 s{sT0}, s{sT0}, 3
    buffer_load_dwordx4 v2, {srd(SWQKV)}, s{sT1} offen lds
    s_cmp_lt_u32 s{sT0}, 28
    s_cbranch_scc1 L_WKROW
    s_waitcnt vmcnt(9) lgkmcnt(0)
    s_add_u32 s{sTAG}, s{sTAG}, 1
    s_branch L_B0
''')
k('L_W0:')
k(f's_cmp_lt_u32 s{sI}, 21')
lab_mod = k.begin_if('s_cbranch_scc0')
k(f's_mul_i32 s{sT0}, s{sXCD}, 21')
k(f's_add_u32 s{sT0}, s{sT0}, s{sI}')
k('v_lshlrev_b32 v1, 4, v0')
k(f'buffer_load_dwordx4 v[8:11], v1, {srd(SC)}, 0 offen')
k('v_lshrrev_b32 v2, 1, v0')
k('v_mul_u32_u24 v2, 5376, v2')
k('v_and_b32 v3, 1, v0')
k('v_lshl_add_u32 v2, v3, 4, v2')
k(f's_lshl_b32 s{sT1}, s{sT0}, 5')
modtok = []
for 	m in range(14):
    k(f's_mov_b32 m0, {L_MODW + m * 1024}')
    modtok.append(k(f'buffer_load_dwordx4 v2, {srd(SWMOD)}, s{sT1} offen lds'))
    if m < 13:
        k(f's_add_u32 s{sT1}, s{sT1}, {32 * 5376}')
for q in range(4):
    unpack(12 + 2 * q, 13 + 2 * q, 8 + q)
for q in range(8):
    k(f'v_mul_f32 v{20 + q}, {hex(f2u(-math.log2(math.e)))}, v{12 + q}')
for q in range(8):
    k(f'v_exp_f32 v{20 + q}, v{20 + q}')
for q in range(8):
    k(f'v_add_f32 v{20 + q}, 1.0, v{20 + q}')
for q in range(8):
    k(f'v_rcp_f32 v{20 + q}, v{20 + q}')
for q in range(8):
    k(f'v_mul_f32 v{20 + q}, v{12 + q}, v{20 + q}')
for q in range(4):
    k(f'v_cvt_pk_bf16_f32 v{8 + q}, v{20 + 2 * q}, v{21 + 2 * q}')
k(f'v_add_u32 v4, {L_SILU}, v1')
k('ds_write_b128 v4, v[8:11]')
k('v_lshrrev_b32 v3, 4, v0')
k(f'v_lshlrev_b32 v4, 4, v3')
k(f'v_add_u32 v4, {L_SILU}, v4')
for m in range(14):
    k(f'ds_read_b128 v[{32 + 4 * m}:{35 + 4 * m}], v4 offset:{64 * m}')
k('v_bfe_u32 v5, v0, 2, 2')
k('v_lshl_add_u32 v5, v3, 3, v5')
k('v_lshlrev_b32 v5, 5, v5')
k('v_and_b32 v6, 3, v0')
k('v_lshl_add_u32 v5, v6, 3, v5')
k(f'v_add_u32 v5, {L_MODW}, v5')
for m in range(14):
    k.wait_vm(modtok[m])
    k(f'ds_read_b64_tr_b16 v[{96 + 4 * m}:{97 + 4 * m}], v5 offset:{1024 * m}')
    k(f'ds_read_b64_tr_b16 v[{98 + 4 * m}:{99 + 4 * m}], v5 offset:{1024 * m + 128}')
k.wait_lgkm0()
for m in range(14):
    k(f'v_mfma_f32_16x16x32_bf16 v[12:15], v[{96 + 4 * m}:{99 + 4 * m}], v[{32 + 4 * m}:{35 + 4 * m}], '
      + ('0' if m == 0 else 'v[12:15]'))
k(f's_sub_u32 s{sT1}, s{sT0}, 28')
k(f's_cmp_lt_u32 s{sT1}, 28')
k(f's_cselect_b32 s{sT2}, 1.0, 0')
k(f's_sub_u32 s{sT1}, s{sT0}, 112')
k(f's_cmp_lt_u32 s{sT1}, 28')
k(f's_cselect_b32 s{sT2}, 1.0, s{sT2}')
k(f's_lshl_b32 s{sT1}, s{sT0}, 6')
k(f's_add_u32 s{sT1}, s{sT1}, {WS_MOD}')
k(f's_add_u32 s{sT3}, s{sTAG}, 1')
k('v_lshlrev_b32 v4, 4, v3')
k(f'v_mov_b32 v10, s{sT3}')
k(f'v_mov_b32 v11, s{sT3}')
k('v_cvt_pk_bf16_f32 v8, v12, v13')
k('v_cvt_pk_bf16_f32 v9, v14, v15')
unpack(12, 13, 8)
unpack(14, 15, 9)
for q in range(4):
    k(f'v_add_f32 v{12 + q}, s{sT2}, v{12 + q}')
k('v_cvt_pk_bf16_f32 v8, v12, v13')
k('v_cvt_pk_bf16_f32 v9, v14, v15')
k('s_mov_b32 exec_lo, 0x00010001')
k('s_mov_b32 exec_hi, 0x00010001')
k(f'buffer_store_dwordx4 v[8:11], v4, {srd(SWS)}, s{sT1} offen sc1')
k('s_mov_b64 exec, -1')
k.end_if(lab_mod)
k.wait_lgkm0()
k(f's_add_u32 s{sTAG}, s{sTAG}, 1')
stamp('mod_pub')
k('L_B0:')
k('s_barrier')
stamp('x_landed')

N0 = 8
VB = 216


def nreg(s):
    return N0 + 8 * s if s < 26 else VB + 8 * (s - 26)


k('v_and_b32 v1, 31, v0')
k(f'v_mul_u32_u24 v1, {XS_STRIDE}, v1')
k('v_lshrrev_b32 v2, 5, v0')
k('v_lshl_add_u32 v1, v2, 4, v1')
k(f's_mul_i32 s{sT0}, s{sW}, {32 * XS_STRIDE}')
k(f'v_add_u32 v1, s{sT0}, v1')
for s in range(28):
    k(f'ds_read_b128 v[{nreg(s) + 4}:{nreg(s) + 7}], v1 offset:{32 * s}')
k('v_lshrrev_b32 v2, 2, v0')
k('v_mul_u32_u24 v2, 2688, v2')
k('v_and_b32 v3, 3, v0')
k('v_lshl_add_u32 v2, v3, 4, v2')
k('v_lshrrev_b32 v3, 3, v0')
k('v_and_b32 v4, 7, v0')
k('v_and_b32 v5, 6, v3')
k('v_xor_b32 v4, v4, v5')
k('v_mul_u32_u24 v3, 896, v3')
k('v_lshl_add_u32 v3, v4, 4, v3')
k('v_lshrrev_b32 v4, 5, v0')
k('v_bfe_u32 v5, v0, 2, 2')
k('v_lshl_add_u32 v4, v4, 3, v5')
k('v_lshlrev_b32 v4, 6, v4')
k('v_bfe_u32 v5, v0, 4, 1')
k('v_lshl_add_u32 v4, v5, 5, v4')
k('v_and_b32 v5, 3, v0')
k('v_lshl_add_u32 v4, v5, 3, v4')
k(f'v_add_u32 v5, {L_WK}, v4')
k(f'v_add_u32 v4, {L_WV}, v4')
k.barrier()
stamp('x_read')

tok = {}


def dma_w(part, lbase, q):
    def f():
        if q == 0:
            k(f's_mul_i32 s{sT4}, s{sW}, {7 * 16 * 2688}')
            k(f's_mul_i32 s{sT5}, s{sH}, 56')
            k(f's_add_u32 s{sT4}, s{sT4}, s{sT5}')
            k(f's_add_u32 s{sT4}, s{sT4}, {part * 896}')
            k(f's_mul_i32 s{sT5}, s{sW}, {7 * 1024}')
            k(f's_add_u32 m0, s{sT5}, {lbase}')
        else:
            k(f's_add_u32 s{sT4}, s{sT4}, {16 * 2688}')
            k('s_add_u32 m0, m0, 1024')
        tok[('w', part)] = k(f'buffer_load_dwordx4 v2, {srd(SWQKV)}, s{sT4} offen lds')
    return f


def dma_wphi():
    k(f's_cmp_eq_u32 s{sW}, 0')
    lab = k.begin_if('s_cbranch_scc0')
    k(f's_mul_i32 s{sT4}, s{sH}, 1568')
    k(f's_mov_b32 m0, {L_WPHI}')
    k('v_lshlrev_b32 v6, 4, v0')
    k(f'buffer_load_dwordx4 v6, {srd(SWPHI)}, s{sT4} offen lds')
    k('s_mov_b32 exec_hi, 0xffff')
    k(f'buffer_load_dwordx4 v6, {srd(SWPHI)}, s{sT4} offen offset:1024 lds')
    k('s_mov_b32 exec_hi, -1')
    k.end_if(lab)


def dma_wo(q):
    def f():
        k(f's_mul_i32 s{sT4}, s{sW}, 15')
        k(f's_add_u32 s{sT4}, s{sT4}, {q}')
        k(f's_min_u32 s{sT4}, s{sT4}, 56')
        k(f's_lshl_b32 m0, s{sT4}, 10')
        k(f's_mul_i32 s{sT4}, s{sT4}, {8 * 896}')
        k(f's_lshl_b32 s{sT5}, s{sCB}, 7')
        k(f's_add_u32 s{sT4}, s{sT4}, s{sT5}')
        tok['wo'] = k(f'buffer_load_dwordx4 v3, {srd(SWO)}, s{sT4} offen lds')
    return f


SUM, SQ = 248, 250
ln_a = []
for s in range(28):
    n = nreg(s)
    ln_a += [f'v_lshlrev_b32 v{n}, 16, v{n + 4}', f'v_and_b32 v{n + 1}, 0xffff0000, v{n + 4}',
             f'v_lshlrev_b32 v{n + 2}, 16, v{n + 5}', f'v_and_b32 v{n + 3}, 0xffff0000, v{n + 5}',
             f'v_lshlrev_b32 v{n + 4}, 16, v{n + 6}', f'v_and_b32 v{n + 5}, 0xffff0000, v{n + 6}',
             f'v_lshlrev_b32 v{n + 6}, 16, v{n + 7}', f'v_and_b32 v{n + 7}, 0xffff0000, v{n + 7}']
    for q in range(4):
        p = vr(n + 2 * q, 2)
        if s == 0 and q == 0:
            ln_a += [f'v_pk_add_f32 v[{SUM}:{SUM + 1}], {p}, 0 op_sel_hi:[1,0]',
                     f'v_pk_mul_f32 v[{SQ}:{SQ + 1}], {p}, {p}']
        else:
            ln_a += [f'v_pk_add_f32 v[{SUM}:{SUM + 1}], v[{SUM}:{SUM + 1}], {p}',
                     f'v_pk_fma_f32 v[{SQ}:{SQ + 1}], {p}, {p}, v[{SQ}:{SQ + 1}]']


def wread(s, which, dst):
    c, b = dst
    addr, off = ('v5', 0) if which == 0 else ('v4', 0 if which == 1 else 28672)
    return [f'ds_read_b64_tr_b16 {vr(b, 2, c)}, {addr} offset:{off + 1024 * s}',
            f'ds_read_b64_tr_b16 {vr(b + 2, 2, c)}, {addr} offset:{off + 1024 * s + 256}']


def grouped(items, n):
    return ['\n'.join(items[i:i + n]) for i in range(0, len(items), n)]


third = 160
side1 = [dma_w(2, L_WV, q) for q in range(7)] + [dma_wphi] + [dma_w(0, L_WQ, q) for q in range(7)]
weave(ln_a[:third], side1, 10)
k.raw('s_waitcnt vmcnt(14)')
k('s_barrier')
kreads = []
for s in range(26):
    kreads += wread(s, 0, ('a', 32 + 8 * s))
side2 = []
for gi, gtxt in enumerate(grouped(kreads, 4)):
    side2.append(gtxt)
    side2.append(dma_wo(gi))
side2 += [dma_wo(13), dma_wo(14)]
weave(ln_a[third:], side2, 10)
k(f'v_add_f32 v{SUM}, v{SUM}, v{SUM + 1}')
k(f'v_add_f32 v{SQ}, v{SQ}, v{SQ + 1}')
k(f'v_permlane32_swap_b32 v{SUM}, v{SQ}')
k(f'v_add_f32 v{SUM}, v{SUM}, v{SQ}')
k(f'v_mov_b32 v{SQ}, v{SUM}')
k(f'v_permlane32_swap_b32 v{SUM}, v{SQ}')
k(f'v_mul_f32 v{SUM}, {hex(f2u(1.0 / 448))}, v{SUM}')
k(f'v_mul_f32 v{SQ}, {hex(f2u(1.0 / 448))}, v{SQ}')
k(f'v_fma_f32 v{SQ}, -v{SUM}, v{SUM}, v{SQ}')
k(f'v_max_f32 v{SQ}, 0, v{SQ}')
k(f'v_add_f32 v{SQ}, {hex(f2u(1e-5))}, v{SQ}')
k(f'v_rsq_f32 v{SQ}, v{SQ}')
k.wait_vm(tok[('w', 2)])
k('s_barrier')
k(f'v_mul_f32_e64 v{SUM}, -v{SUM}, v{SQ}')
ln_b = []
for s in [26, 27] + list(range(26)):
    n = nreg(s)
    for q in range(4):
        p = vr(n + 2 * q, 2)
        ln_b.append(f'v_pk_fma_f32 {p}, {p}, v[{SQ}:{SQ + 1}], v[{SUM}:{SUM + 1}] op_sel_hi:[1,0,0]')
    if s == 27:
        for q in range(16):
            ln_b.append(f'v_accvgpr_write_b32 a{240 + q}, v{VB + q}')
vreads = []
for s in range(26):
    vreads += wread(s, 1, ('a', 36 + 8 * s))
weave(ln_b, grouped(vreads, 4), 9)
stamp('ln1_done')

k(f's_lshl_b32 s{sT0}, s{sW}, 6')
k(f'v_add_u32 v1, s{sT0}, v0')
k('v_min_u32 v1, 223, v1')
k('v_lshlrev_b32 v2, 4, v1')
k(f's_mov_b32 s{sT1}, {WS_MOD}')
k('v_subrev_u32 v6, 112, v1')
k('v_cmp_gt_u32 vcc, 112, v1')
k('v_cndmask_b32 v6, v6, v1, vcc')
k('v_lshrrev_b32 v7, 1, v6')
k('v_lshlrev_b32 v7, 6, v7')
k('v_and_b32 v6, 1, v6')
k('v_lshl_add_u32 v7, v6, 4, v7')
k('v_cndmask_b32 v6, 0, 32, vcc')
k(f'v_mov_b32 v1, {L_VEC}')
k('v_add3_u32 v7, v7, v6, v1')
k(f's_mov_b32 s{sCNT}, 0')
k.wait_vm0()
k.raw(f'''L_PA:
    buffer_load_dwordx4 v[{VB}:{VB + 3}], v2, {srd(SWS)}, s{sT1} offen sc1
    s_add_u32 s{sCNT}, s{sCNT}, 1
    s_waitcnt vmcnt(0)
    v_cmp_ne_u32 vcc, s{sTAG}, v{VB + 2}
    s_cbranch_vccz L_PAD
    s_cmp_lt_u32 s{sCNT}, 0x40000
    s_cbranch_scc1 L_PA
L_PAD:''')
k.assume_vm0()
unpack(VB + 4, VB + 5, VB)
unpack(VB + 6, VB + 7, VB + 1)
k(f'ds_write_b128 v7, v[{VB + 4}:{VB + 7}]')
k('v_lshrrev_b32 v6, 5, v0')
k('v_lshl_add_u32 v6, v6, 6, v1')
k.barrier()
stamp('mod_got')


def hreg(s):
    return N0 + 8 * s if s < 26 else (12 if s == 26 else 28)


def nel(s, j):
    if s < 26:
        return N0 + 8 * s + j
    return (12 if s == 26 else 28) + (j if j < 4 else j + 4)


def vbuf(hs):
    return VB + 8 * (hs & 3)


def vread(hs):
    s, h_ = hs >> 1, hs & 1
    b = vbuf(hs)
    return [f'ds_read_b128 v[{b}:{b + 3}], v6 offset:{128 * s + 16 * h_}',
            f'ds_read_b128 v[{b + 4}:{b + 7}], v6 offset:{128 * s + 32 + 16 * h_}']


def wfrag(s, which):
    ss = s if s < 26 else s - 26
    return 32 + 8 * ss + 4 * which


WPH = (44, 52)
for hs in range(4):
    run(vread(hs))
for s in range(29):
    if s < 28:
        for h_ in range(2):
            b = vbuf(2 * s + h_)
            for j in range(4):
                e = nel(s, 4 * h_ + j)
                k(f'v_fma_f32 v{e}, v{e}, v{b + j}, v{b + 4 + j}')
            if s > 0:
                p = s - 1
                if h_ == 0:
                    k(f'v_mfma_f32_32x32x16_bf16 a[0:15], {ar(wfrag(p, 0), 4)}, {vr(hreg(p), 4)}, '
                      + ('0' if p == 0 else 'a[0:15]'))
        rd = []
        for hs in (2 * s + 4, 2 * s + 5):
            if hs < 56:
                rd += vread(hs)
        if s == 4:
            rd += wread(26, 0, ('a', wfrag(26, 0))) + wread(26, 1, ('a', wfrag(26, 1)))
        if s == 5:
            rd += wread(27, 0, ('a', wfrag(27, 0))) + wread(27, 1, ('a', wfrag(27, 1)))
        if s == 8:
            k('v_lshrrev_b32 v1, 5, v0')
            k('v_bfe_u32 v2, v0, 2, 2')
            k('v_lshl_add_u32 v1, v1, 2, v2')
            k('v_mul_u32_u24 v1, 56, v1')
            k('v_bfe_u32 v2, v0, 4, 1')
            k('v_lshl_add_u32 v1, v2, 5, v1')
            k('v_and_b32 v2, 3, v0')
            k('v_lshl_add_u32 v1, v2, 3, v1')
            k(f'v_add_u32 v1, {L_WPHI}, v1')
            for t in range(2):
                for rho in range(2):
                    rd.append(f'ds_read_b64_tr_b16 {vr(WPH[t] + 2 * rho, 2)}, v1 offset:{(16 * t + 8 * rho) * 56}')
        run(rd)
        if s > 0:
            p = s - 1
            k(f'v_mfma_f32_32x32x16_bf16 a[16:31], {vr(hreg(p), 4)}, {ar(wfrag(p, 1), 4)}, '
              + ('0' if p == 0 else 'a[16:31]'))
        for q in range(4):
            k(f'v_cvt_pk_bf16_f32 v{hreg(s) + q}, v{nel(s, 2 * q)}, v{nel(s, 2 * q + 1)}')
        if s in (10, 11, 12, 13):
            for q in range(4):
                i_ = 4 * (s - 10) + q
                k(f'v_accvgpr_read_b32 v{nel(26 + (i_ >> 3), i_ & 7)}, a{240 + i_}')
    else:
        p = 27
        k(f'v_mfma_f32_32x32x16_bf16 a[0:15], {ar(wfrag(p, 0), 4)}, {vr(hreg(p), 4)}, a[0:15]')
        k(f'v_mfma_f32_32x32x16_bf16 a[16:31], {vr(hreg(p), 4)}, {ar(wfrag(p, 1), 4)}, a[16:31]')
k(f'v_cndmask_b32 v{WPH[1] + 2}, v{WPH[1] + 2}, 0, s[{sHI}:{sHI + 1}]')
k(f'v_cndmask_b32 v{WPH[1] + 3}, v{WPH[1] + 3}, 0, s[{sHI}:{sHI + 1}]')
stamp('kv_gemm')

LG = 216
EX = 232


def up(s):
    return N0 + 8 * s + 4


LOG2E = math.log2(math.e)


def feature_map(src_pairs, out4):
    k(f'v_mfma_f32_32x32x16_bf16 {vr(LG, 16)}, {vr(WPH[0], 4)}, {vr(src_pairs[0], 4)}, 0')
    k(f'v_mfma_f32_32x32x16_bf16 {vr(LG, 16)}, {vr(WPH[1], 4)}, {vr(src_pairs[1], 4)}, {vr(LG, 16)}')


def softmax2(out4):
    M, Nn, M2, N2 = 248, 250, 249, 251
    L = LG
    k(f'v_max3_f32 v{M}, v{L}, v{L + 1}, v{L + 2}')
    k(f'v_min3_f32 v{Nn}, v{L}, v{L + 1}, v{L + 2}')
    for q in range(3, 11, 2):
        k(f'v_max3_f32 v{M}, v{M}, v{L + q}, v{L + q + 1}')
        k(f'v_min3_f32 v{Nn}, v{Nn}, v{L + q}, v{L + q + 1}')
    k(f'v_max_f32 v{M}, v{M}, v{L + 11}')
    k(f'v_min_f32 v{Nn}, v{Nn}, v{L + 11}')
    k(f'v_max3_f32 v{M2}, v{M}, v{L + 12}, v{L + 13}')
    k(f'v_min3_f32 v{N2}, v{Nn}, v{L + 12}, v{L + 13}')
    k(f'v_max3_f32 v{M2}, v{M2}, v{L + 14}, v{L + 15}')
    k(f'v_min3_f32 v{N2}, v{N2}, v{L + 14}, v{L + 15}')
    k(f'v_cndmask_b32 v{M}, v{M2}, v{M}, s[{sHI}:{sHI + 1}]')
    k(f'v_cndmask_b32_e64 v{Nn}, -v{N2}, -v{Nn}, s[{sHI}:{sHI + 1}]')
    k(f's_mov_b32 s{sC0}, {hex(f2u(LOG2E))}')
    k(f's_mov_b32 s{sC0 + 1}, {hex(f2u(LOG2E))}')
    k(f'v_permlane32_swap_b32 v{M}, v{Nn}')
    k(f'v_max_f32 v{M}, v{M}, v{Nn}')
    k(f'v_mul_f32 v{M}, {hex(f2u(-LOG2E))}, v{M}')
    k(f'v_mov_b32 v{Nn}, v{M}')
    k(f'v_mov_b32 v252, 0xff800000')
    k(f'v_permlane32_swap_b32 v{M}, v{Nn}')
    k(f'v_cndmask_b32 v{M2}, v{M}, v252, s[{sHI}:{sHI + 1}]')
    k(f'v_cndmask_b32 v{N2}, v{Nn}, v252, s[{sHI}:{sHI + 1}]')
    for q in range(8):
        sel = 'op_sel_hi:[1,1,0]' if q < 6 else 'op_sel:[0,0,1] op_sel_hi:[1,1,1]'
        k(f'v_pk_fma_f32 {vr(EX + 2 * q, 2)}, {vr(L + 2 * q, 2)}, s[{sC0}:{sC0 + 1}], v[{M}:{M + 1}] {sel}')
        k(f'v_pk_fma_f32 {vr(L + 2 * q, 2)}, {vr(L + 2 * q, 2)}, s[{sC0}:{sC0 + 1}], v[{Nn}:{Nn + 1}] {sel} '
          'neg_lo:[1,0,0] neg_hi:[1,0,0]')
    for q in range(16):
        k(f'v_exp_f32 v{EX + q}, v{EX + q}')
    for q in range(16):
        k(f'v_exp_f32 v{L + q}, v{L + q}')
    k(f'v_pk_add_f32 v[{M}:{M + 1}], {vr(EX, 2)}, {vr(EX + 2, 2)}')
    k(f'v_pk_add_f32 v[{Nn}:{Nn + 1}], {vr(L, 2)}, {vr(L + 2, 2)}')
    for q in range(2, 8):
        k(f'v_pk_add_f32 v[{M}:{M + 1}], v[{M}:{M + 1}], {vr(EX + 2 * q, 2)}')
        k(f'v_pk_add_f32 v[{Nn}:{Nn + 1}], v[{Nn}:{Nn + 1}], {vr(L + 2 * q, 2)}')
    k(f'v_add_f32 v{M}, v{M}, v{M + 1}')
    k(f'v_add_f32 v{Nn}, v{Nn}, v{Nn + 1}')
    k(f'v_permlane32_swap_b32 v{M}, v{Nn}')
    k(f'v_add_f32 v{M}, v{M}, v{Nn}')
    k(f'v_rcp_f32 v{M}, v{M}')
    k(f'v_mov_b32 v{Nn}, v{M}')
    k(f'v_permlane32_swap_b32 v{M}, v{Nn}')
    for q in range(8):
        k(f'v_pk_mul_f32 {vr(EX + 2 * q, 2)}, {vr(EX + 2 * q, 2)}, v[{M}:{M + 1}] op_sel_hi:[1,0]')
        k(f'v_pk_mul_f32 {vr(L + 2 * q, 2)}, {vr(L + 2 * q, 2)}, v[{Nn}:{Nn + 1}] op_sel_hi:[1,0]')
    for q in range(8):
        k(f'v_cvt_pk_bf16_f32 v{out4[q >> 2] + (q & 3)}, v{EX + 2 * q}, v{EX + 2 * q + 1}')
    for q in range(8):
        k(f'v_cvt_pk_bf16_f32 v{out4[2 + (q >> 2)] + (q & 3)}, v{L + 2 * q}, v{L + 2 * q + 1}')


KP = (up(6), up(7))
VP = (up(8), up(9))
PK = (up(10), up(11), up(12), up(13))
for q in range(16):
    k(f'v_accvgpr_read_b32 v{EX + q}, a{q}')
for q in range(8):
    k(f'v_cvt_pk_bf16_f32 v{KP[q >> 2] + (q & 3)}, v{EX + 2 * q}, v{EX + 2 * q + 1}')
feature_map(KP, PK)
for q in range(16):
    k(f'v_accvgpr_read_b32 v{EX + q}, a{16 + q}')
for q in range(8):
    k(f'v_cvt_pk_bf16_f32 v{VP[q >> 2] + (q & 3)}, v{EX + 2 * q}, v{EX + 2 * q + 1}')
k('s_mov_b32 exec_lo, 0x10000000')
k('s_mov_b32 exec_hi, 0x10000000')
for q in range(8):
    k(f'v_mov_b32 v{VP[q >> 2] + (q & 3)}, 0x3f803f80')
k('s_mov_b64 exec, -1')
softmax2(PK)
k('v_and_b32 v1, 31, v0')
k(f'v_mul_u32_u24 v1, {PHI_STRIDE}, v1')
k('v_lshrrev_b32 v2, 5, v0')
k('v_lshl_add_u32 v1, v2, 3, v1')
k(f'v_add_u32 v1, s{sSLOT}, v1')
k('v_bfe_u32 v3, v0, 4, 1')
k('v_lshlrev_b32 v3, 10, v3')
k('v_lshl_add_u32 v3, v2, 8, v3')
k('v_and_b32 v7, 15, v0')
k('v_lshl_add_u32 v3, v7, 4, v3')
k(f'v_add_u32 v3, s{sSLOT}, v3')
k.barrier()
for sg in range(2):
    for q in range(4):
        r = PK[2 * sg + (q >> 1)] + 2 * (q & 1)
        k(f'ds_write_b64 v1, {vr(r, 2)} offset:{64 * sg + 16 * q}')
for t in range(2):
    k(f'ds_write_b128 v3, {vr(VP[t], 4)} offset:{VF_OFF + 512 * t}')
k('v_bfe_u32 v1, v0, 4, 1')
k('v_lshlrev_b32 v1, 2, v1')
k('v_lshl_add_u32 v1, v2, 4, v1')
k('v_bfe_u32 v7, v0, 2, 2')
k('v_add_u32 v1, v1, v7')
k(f'v_mul_u32_u24 v1, {PHI_STRIDE}, v1')
k('v_and_b32 v7, 3, v0')
k('v_lshl_add_u32 v1, v7, 3, v1')
k(f's_lshl_b32 s{sT0}, s{sW}, 5')
k(f's_add_u32 s{sT0}, s{sT0}, {L_SLOT}')
k(f'v_add_u32 v1, s{sT0}, v1')
k('v_lshlrev_b32 v7, 4, v0')
k(f'v_add_u32 v3, {L_SLOT}, v7')
k(f's_lshl_b32 s{sT0}, s{sH}, 4')
k(f's_add_u32 s{sT0}, s{sT0}, s{sRB}')
k(f's_lshl_b32 s{sT1}, s{sT0}, 12')
k(f's_lshl_b32 s{sT2}, s{sW}, 10')
k(f's_add_u32 s{sT1}, s{sT1}, s{sT2}')
k(f's_add_u32 s{sT1}, s{sT1}, {WS_KVP}')
k(f's_lshl_b32 s{sT0}, s{sT0}, 7')
k(f's_add_u32 s{sT0}, s{sT0}, {FGB}')
k.barrier()
AF = [up(14), up(15), up(16), up(17)]
for u in range(4):
    for rho in range(2):
        k(f'ds_read_b64_tr_b16 {vr(AF[u] + 2 * rho, 2)}, v1 offset:{8192 * u + 8 * rho * PHI_STRIDE}')
    for e in range(2):
        k(f'ds_read_b128 {vr(LG + 8 * u + 4 * e, 4)}, v3 offset:{8192 * u + VF_OFF + 1024 * e}')
KD = (up(18), up(19))
for u in range(4):
    for e in range(2):
        k(f'v_mfma_f32_16x16x32_bf16 {vr(KD[e], 4)}, {vr(AF[u], 4)}, {vr(LG + 8 * u + 4 * e, 4)}, '
          + ('0' if u == 0 else vr(KD[e], 4)))
KO = up(20)
for e in range(2):
    for q in range(2):
        k(f'v_cvt_pk_bf16_f32 v{KO + 2 * e + q}, v{KD[e] + 2 * q}, v{KD[e] + 2 * q + 1}')
st = k(f'buffer_store_dwordx4 {vr(KO, 4)}, v7, {srd(SWS)}, s{sT1} offen sc1')
publish(st, 1, None, sT0)
stamp('kv_pub')

QB = [up(14), up(15), up(16), up(17)]
for s in range(3):
    run(wread(s, 2, ('v', QB[s & 3])))
for s in range(28):
    if s + 3 < 28:
        run(wread(s + 3, 2, ('v', QB[(s + 3) & 3])))
    k(f'v_mfma_f32_32x32x16_bf16 {vr(EX, 16)}, {vr(QB[s & 3], 4)}, {vr(hreg(s), 4)}, '
      + ('0' if s == 0 else vr(EX, 16)))
for q in range(8):
    k(f'v_cvt_pk_bf16_f32 v{KP[q >> 2] + (q & 3)}, v{EX + 2 * q}, v{EX + 2 * q + 1}')
feature_map(KP, None)
k.barrier()
k('v_lshrrev_b32 v3, 3, v0')
k('v_and_b32 v4, 7, v0')
k('v_and_b32 v5, 6, v3')
k('v_xor_b32 v4, v4, v5')
k('v_mul_u32_u24 v3, 3584, v3')
k('v_lshl_add_u32 v3, v4, 4, v3')
k(f's_lshr_b32 s{sT0}, s{sH}, 1')
k(f's_mul_i32 s{sT0}, s{sT0}, {7 * 32}')
k(f's_and_b32 s{sT1}, s{sH}, 1')
k(f's_lshl_b32 s{sT2}, s{sT1}, 7')
k(f's_add_u32 s{sT2}, s{sT2}, s{sT0}')
k(f's_add_u32 s{sT2}, s{sT2}, 1792')
k(f's_cmp_eq_u32 s{sT1}, 0')
k(f's_cselect_b32 s{sT3}, s{sT2}, s{sT0}')
k(f'v_mov_b32 v5, s{sT2}')
k(f'v_mov_b32 v6, s{sT3}')
k('v_cmp_gt_u32 vcc, 6, v4')
k('v_cndmask_b32 v5, v6, v5, vcc')
k('v_add_u32 v3, v3, v5')


def dma_win1(q):
    def f():
        if q == 0:
            k(f's_mul_i32 s{sT4}, s{sW}, {14 * 8 * 3584}')
            k(f's_mul_i32 s{sT5}, s{sW}, {14 * 1024}')
            k(f's_add_u32 m0, s{sT5}, {L_B}')
        else:
            k(f's_add_u32 s{sT4}, s{sT4}, {8 * 3584}')
            k('s_add_u32 m0, m0, 1024')
        tok['win1'] = k(f'buffer_load_dwordx4 v3, {srd(SWIN)}, s{sT4} offen lds')
    return f


run([dma_win1(q) for q in range(14)])
PQ = (up(10), up(11), up(12), up(13))
softmax2(PQ)
stamp('q_done')

k(f's_lshl_b32 s{sT0}, s{sW}, 6')
k(f'v_add_u32 v1, s{sT0}, v0')
k('v_min_u32 v1, 223, v1')
k('v_subrev_u32 v2, 112, v1')
k('v_cmp_gt_u32 vcc, 112, v1')
k('v_cndmask_b32 v2, v2, v1, vcc')
k('v_lshlrev_b32 v1, 4, v1')
k(f'v_mov_b32 v3, {448 * 16}')
k(f'v_mov_b32 v4, {224 * 16}')
k('v_cndmask_b32 v3, v3, v4, vcc')
k('v_add_u32 v3, v3, v1')
k(f'v_add_u32 v1, {336 * 16}, v1')
k('v_lshrrev_b32 v4, 3, v2')
k('v_lshlrev_b32 v4, 6, v4')
k('v_and_b32 v5, 3, v2')
k('v_lshl_add_u32 v4, v5, 4, v4')
k('v_bfe_u32 v5, v2, 2, 1')
k('v_lshl_add_u32 v4, v5, 3, v4')
k(f'v_mov_b32 v5, {L_VECP + 896}')
k(f'v_mov_b32 v6, {L_VECP}')
k('v_cndmask_b32 v5, v5, v6, vcc')
k('v_add_u32 v4, v4, v5')
k(f's_mov_b32 s{sT1}, {WS_MOD}')
k(f's_mov_b32 s{sCNT}, 0')
k.wait_vm0()
k.raw(f'''L_PM:
    buffer_load_dwordx4 v[{LG}:{LG + 3}], v1, {srd(SWS)}, s{sT1} offen sc1
    buffer_load_dwordx4 v[{LG + 4}:{LG + 7}], v3, {srd(SWS)}, s{sT1} offen sc1
    s_add_u32 s{sCNT}, s{sCNT}, 1
    s_waitcnt vmcnt(0)
    v_cmp_ne_u32 vcc, s{sTAG}, v{LG + 2}
    s_cbranch_vccnz L_PM1
    v_cmp_ne_u32 vcc, s{sTAG}, v{LG + 6}
    s_cbranch_vccz L_PMD
L_PM1:
    s_cmp_lt_u32 s{sCNT}, 0x40000
    s_cbranch_scc1 L_PM
L_PMD:''')
k.assume_vm0()
k(f'ds_write_b64 v4, v[{LG}:{LG + 1}]')
k(f'ds_write_b64 v4, v[{LG + 4}:{LG + 5}] offset:1792')

k('v_and_b32 v1, 15, v0')
k('v_lshlrev_b32 v1, 7, v1')
k(f's_lshl_b32 s{sT0}, s{sH}, 11')
k(f's_add_u32 s{sT0}, s{sT0}, {FGB}')
k(f's_lshl_b32 s{sT1}, s{sH}, 16')
k(f's_lshl_b32 s{sT2}, s{sW}, 10')
k(f's_add_u32 s{sT1}, s{sT1}, s{sT2}')
k(f's_add_u32 s{sT1}, s{sT1}, {WS_KVP}')
poll(2, None, None, 1, sT0)
stamp('kv_flag')
G0 = 120
for p in range(16):
    k(f'buffer_load_dwordx4 {vr(G0 + 4 * p, 4)}, v7, {srd(SWS)}, s{sT1} offen sc1')
    if p < 15:
        k(f's_add_u32 s{sT1}, s{sT1}, 4096')
k('v_bfe_u32 v1, v0, 4, 1')
k('v_lshlrev_b32 v1, 9, v1')
k('v_and_b32 v2, 15, v0')
k('v_lshl_add_u32 v1, v2, 4, v1')
k('v_lshrrev_b32 v2, 5, v0')
k('v_lshl_add_u32 v1, v2, 3, v1')
k(f's_lshl_b32 s{sT2}, s{sW}, 10')
k(f's_add_u32 s{sT2}, s{sT2}, {L_KVF}')
k(f'v_add_u32 v1, s{sT2}, v1')
k(f'v_add_u32 v3, {L_KVF}, v7')
for p in range(16):
    dst = LG if p == 0 else EX
    for q in range(4):
        unpack(dst + 2 * q, dst + 2 * q + 1, G0 + 4 * p + q)
    if p:
        for q in range(4):
            k(f'v_pk_add_f32 {vr(LG + 2 * q, 2)}, {vr(LG + 2 * q, 2)}, {vr(EX + 2 * q, 2)}')
for q in range(4):
    k(f'v_cvt_pk_bf16_f32 v{EX + q}, v{LG + 2 * q}, v{LG + 2 * q + 1}')
for e in range(2):
    k(f'ds_write_b64 v1, {vr(EX + 2 * e, 2)} offset:{256 * e}')
k('v_bfe_u32 v1, v0, 4, 1')
k('v_lshlrev_b32 v1, 14, v1')
k('v_lshl_add_u32 v1, v2, 8, v1')
k('v_and_b32 v4, 15, v0')
k('v_lshl_add_u32 v1, v4, 4, v1')
k(f's_lshl_b32 s{sT1}, s{sRB}, 2')
k(f's_add_u32 s{sT1}, s{sT1}, s{sW}')
k(f's_lshl_b32 s{sT1}, s{sT1}, 15')
k(f's_lshl_b32 s{sT2}, s{sH}, 10')
k(f's_add_u32 s{sT1}, s{sT1}, s{sT2}')
k(f's_add_u32 s{sT1}, s{sT1}, {WS_O}')
k.barrier()
stamp('kv_got')
for x_ in range(4):
    k(f'ds_read_b128 {vr(EX + 4 * x_, 4)}, v3 offset:{1024 * x_}')
for x_ in range(4):
    k(f'v_mfma_f32_32x32x16_bf16 {vr(LG, 16)}, {vr(EX + 4 * x_, 4)}, {vr(PQ[x_], 4)}, '
      + ('0' if x_ == 0 else vr(LG, 16)))
k(f's_lshl_b32 s{sT2}, s{sRB}, 7')
k(f's_lshl_b32 s{sT3}, s{sH}, 2')
k(f's_add_u32 s{sT2}, s{sT2}, s{sT3}')
k(f's_add_u32 s{sT2}, s{sT2}, {FLC}')
k(f's_lshl_b32 s{sT3}, s{sRB}, 4')
k(f's_add_u32 s{sT3}, s{sT3}, s{sH}')
k(f's_lshl_b32 s{sT3}, s{sT3}, 7')
k(f's_add_u32 s{sT3}, s{sT3}, {FGC}')
k(f'v_add_f32 v248, {hex(f2u(1e-6))}, v{LG + 12}')
k('v_mov_b32 v250, v248')
k('v_permlane32_swap_b32 v248, v250')
k('v_rcp_f32 v250, v250')
for q in range(8):
    k(f'v_pk_mul_f32 {vr(LG + 2 * q, 2)}, {vr(LG + 2 * q, 2)}, v[250:251] op_sel_hi:[1,0]')
for q in range(8):
    k(f'v_cvt_pk_bf16_f32 v{EX + q}, v{LG + 2 * q}, v{LG + 2 * q + 1}')
k(f'v_cndmask_b32 v{EX + 6}, v{EX + 6}, 0, s[{sHI}:{sHI + 1}]')
k(f'v_cndmask_b32 v{EX + 7}, v{EX + 7}, 0, s[{sHI}:{sHI + 1}]')
for t in range(2):
    st = k(f'buffer_store_dwordx4 {vr(EX + 4 * t, 4)}, v1, {srd(SWS)}, s{sT1} offen offset:{512 * t} sc1')
publish(st, 2, sT2, sT3)
stamp('o_pub')
finish_early(1)

TA = 8
k('v_lshrrev_b32 v1, 4, v0')
k('v_bfe_u32 v2, v0, 2, 2')
k('v_lshl_add_u32 v2, v1, 2, v2')
k('v_bfe_u32 v3, v2, 1, 2')
k('v_lshlrev_b32 v2, 7, v2')
k('v_lshl_add_u32 v2, v3, 5, v2')
k('v_and_b32 v3, 3, v0')
k(f'v_lshl_add_u32 v{TA}, v3, 3, v2')
for t in range(1, 4):
    k(f'v_xor_b32 v{TA + t}, {32 * t}, v{TA}')

k(f's_lshl_b32 s{sT0}, s{sW}, 5')
k(f'v_xor_b32 v2, s{sT0}, v{TA}')
k(f'v_add_u32 v2, {L_B}, v2')
k('v_bfe_u32 v3, v0, 3, 1')
k('v_xor_b32 v4, 1, v3')
k('v_mul_u32_u24 v4, 896, v4')
k('v_lshl_add_u32 v4, v1, 4, v4')
k(f'v_add_u32 v12, {L_VECP}, v4')
k('v_lshlrev_b32 v4, 5, v1')
k('v_lshl_add_u32 v4, v3, 4, v4')
k(f'v_add_u32 v13, {L_UV}, v4')


def uv_tile(addr, step_stride, rho_stride, woff_sgpr):
    for m in range(14):
        k(f'ds_read_b128 {vr(16 + 4 * m, 4)}, v12 offset:{64 * m}')
        for rho in range(2):
            k(f'ds_read_b64_tr_b16 {vr(72 + 4 * m + 2 * rho, 2)}, v{addr} offset:{step_stride * m + rho_stride * rho}')
    for m in range(14):
        k(f'v_mfma_f32_16x16x32_bf16 {vr(LG, 4)}, {vr(72 + 4 * m, 4)}, {vr(16 + 4 * m, 4)}, '
          + ('0' if m == 0 else vr(LG, 4)))
    k(f'v_add_u32 v4, s{woff_sgpr}, v13')
    k('s_mov_b32 exec_lo, 0x01010101')
    k('s_mov_b32 exec_hi, 0x01010101')
    k(f'ds_write_b128 v4, {vr(LG, 4)}')
    k('s_mov_b64 exec, -1')


k(f's_lshl_b32 s{sT0}, s{sW}, 7')
uv_tile(2, 4096, 2048, sT0)

X1 = 240
k(f's_cmp_lt_u32 s{sCB}, 7')
lab_p2a = k.begin_if('s_cbranch_scc0')
k(f's_lshl_b32 s{sC0}, s{sTB}, 2')
k(f's_add_u32 s{sC0}, s{sC0}, s{sW}')
k('v_and_b32 v2, 15, v0')
k('v_mul_u32_u24 v2, 896, v2')
k('v_lshl_add_u32 v2, v1, 3, v2')
k(f's_mul_i32 s{sT0}, s{sC0}, {16 * 896}')
k(f's_lshl_b32 s{sT1}, s{sCB}, 7')
k(f's_add_u32 s{sT0}, s{sT0}, s{sT1}')
for t in range(4):
    k(f'buffer_load_dwordx2 {vr(X1 + 2 * t, 2)}, v2, {srd(SX)}, s{sT0} offen offset:{32 * t}')
k(f'v_lshl_add_u32 v3, v1, 4, s{sT1}')
k(f'v_add_u32 v3, {L_VECP}, v3')
GA, CBP = 200, 208
for p in range(2):
    k(f'ds_read_b128 {vr(GA + 4 * p, 4)}, v3 offset:{1792 + 64 * p}')
    k(f'ds_read_b128 {vr(CBP + 4 * p, 4)}, v3 offset:{896 + 64 * p}')
k('v_lshrrev_b32 v3, 5, v0')
k('v_lshlrev_b32 v3, 10, v3')
for t in range(4):
    k(f'v_add_u32 v{16 + t}, v3, v{TA + t}')
k('v_and_b32 v3, 15, v0')
k('v_lshlrev_b32 v4, 7, v3')
k('v_lshlrev_b32 v3, 2, v3')
k(f's_lshr_b32 s{sT0}, s{sTB}, 1')
k(f's_lshl_b32 s{sT1}, s{sT0}, 11')
k(f's_add_u32 s{sT1}, s{sT1}, {FGC}')
k(f's_lshl_b32 s{sT0}, s{sT0}, 7')
k(f's_add_u32 s{sT0}, s{sT0}, {FLC}')
k(f's_lshl_b32 s{sT2}, s{sC0}, 14')
k(f's_add_u32 s{sT2}, s{sT2}, {WS_O}')
WB = 96


def wo_reads(h_):
    out = []
    for t in range(4):
        for rho in range(2):
            out.append(f'ds_read_b64_tr_b16 {vr(WB + 16 * (h_ & 3) + 4 * t + 2 * rho, 2)}, '
                       f'v{16 + (t ^ (2 * (h_ & 1)))} offset:{L_A + (28 * h_ + 8 * rho) * 128}')
    return out


for h_ in range(3):
    run(wo_reads(h_))
poll(5, 3, sT0, 4, sT1)
stamp('o_flag')
OA = 32
for h_ in range(16):
    k(f'buffer_load_dwordx4 {vr(OA + 4 * h_, 4)}, v7, {srd(SWS)}, s{sT2} offen offset:{1024 * (h_ & 3)} sc1')
    if h_ & 3 == 3 and h_ < 15:
        k(f's_add_u32 s{sT2}, s{sT2}, 4096')
AC = 160
for h_ in range(16):
    rd = wo_reads(h_ + 3) if h_ + 3 < 16 else []
    for t in range(4):
        k(f'v_mfma_f32_16x16x32_bf16 {vr(AC + 4 * t, 4)}, {vr(WB + 16 * (h_ & 3) + 4 * t, 4)}, {vr(OA + 4 * h_, 4)}, '
          + ('0' if h_ == 0 else vr(AC + 4 * t, 4)))
        run(rd[2 * t:2 * t + 2])
stamp('p2a_gemm')
T1, T2 = 32, 48
for q in range(8):
    unpack(T1 + 2 * q, T1 + 2 * q + 1, X1 + q)
    unpack(T2 + 2 * q, T2 + 2 * q + 1, GA + q)
for q in range(8):
    k(f'v_pk_fma_f32 {vr(T1 + 2 * q, 2)}, {vr(AC + 2 * q, 2)}, {vr(T2 + 2 * q, 2)}, {vr(T1 + 2 * q, 2)}')
for q in range(8):
    k(f'v_cvt_pk_bf16_f32 v{X1 + q}, v{T1 + 2 * q}, v{T1 + 2 * q + 1}')
for q in range(8):
    unpack(T1 + 2 * q, T1 + 2 * q + 1, X1 + q)
    unpack(T2 + 2 * q, T2 + 2 * q + 1, CBP + q)
for q in range(8):
    k(f'v_pk_mul_f32 {vr(T2 + 2 * q, 2)}, {vr(T1 + 2 * q, 2)}, {vr(T2 + 2 * q, 2)}')
for q in range(8):
    k(f'v_cvt_pk_bf16_f32 v{64 + q}, v{T2 + 2 * q}, v{T2 + 2 * q + 1}')
k(f's_mul_i32 s{sT0}, s{sC0}, 14336')
k(f's_lshl_b32 s{sT1}, s{sCB}, 11')
k(f's_add_u32 s{sT0}, s{sT0}, s{sT1}')
k(f's_add_u32 s{sT0}, s{sT0}, {WS_Y}')
for p in range(2):
    k(f'buffer_store_dwordx4 {vr(64 + 4 * p, 4)}, v7, {srd(SWS)}, s{sT0} offen offset:{1024 * p} sc1')
k(f'v_pk_add_f32 v[72:73], {vr(T1, 2)}, {vr(T1 + 2, 2)}')
k(f'v_pk_mul_f32 v[74:75], {vr(T1, 2)}, {vr(T1, 2)}')
for q in range(1, 8):
    if q > 1:
        k(f'v_pk_add_f32 v[72:73], v[72:73], {vr(T1 + 2 * q, 2)}')
    k(f'v_pk_fma_f32 v[74:75], {vr(T1 + 2 * q, 2)}, {vr(T1 + 2 * q, 2)}, v[74:75]')
k('v_add_f32 v72, v72, v73')
k('v_add_f32 v74, v74, v75')
k(f's_lshl_b32 s{sT0}, s{sC0}, 10')
k(f's_lshl_b32 s{sT1}, s{sCB}, 7')
k(f's_add_u32 s{sT0}, s{sT0}, s{sT1}')
k(f's_add_u32 s{sT0}, s{sT0}, {WS_ST1}')
k('v_permlane16_swap_b32 v72, v74')
k('v_add_f32 v72, v72, v74')
k('v_mov_b32 v74, v72')
k('v_lshlrev_b32 v3, 2, v0')
k('v_permlane32_swap_b32 v72, v74')
k('v_add_f32 v72, v72, v74')
k('s_mov_b32 exec_hi, 0')
st = k(f'buffer_store_dword v72, v3, {srd(SWS)}, s{sT0} offen sc1')
k('s_mov_b32 exec_hi, -1')
k(f's_lshl_b32 s{sT2}, s{sTB}, 7')
k(f's_lshl_b32 s{sT3}, s{sCB}, 2')
k(f's_add_u32 s{sT2}, s{sT2}, s{sT3}')
k(f's_add_u32 s{sT2}, s{sT2}, {FLD}')
k(f's_lshl_b32 s{sT3}, s{sTB}, 3')
k(f's_add_u32 s{sT3}, s{sT3}, s{sCB}')
k(f's_lshl_b32 s{sT3}, s{sT3}, 7')
k(f's_add_u32 s{sT3}, s{sT3}, {FGD}')
publish(st, 2, sT2, sT3)
k.end_if(lab_p2a)
k.barrier()
stamp('y_pub')
finish_early(2)

for q in range(3):
    k(f'v_add_u32 v2, {64 * q}, v0')
    k('v_mul_u32_u24 v3, 10923, v2')
    k('v_lshrrev_b32 v3, 16, v3')
    k('v_mul_u32_u24 v4, 6, v3')
    k('v_sub_u32 v4, v2, v4')
    k('v_mul_u32_u24 v3, 3584, v3')
    k(f'v_lshl_add_u32 v{16 + q}, v4, 4, v3')
k(f's_lshr_b32 s{sT0}, s{sH}, 1')
k(f's_mul_i32 s{sT0}, s{sT0}, {7 * 32}')
k(f's_and_b32 s{sT1}, s{sH}, 1')
k(f's_lshl_b32 s{sT1}, s{sT1}, 7')
k(f's_add_u32 s{sT0}, s{sT0}, s{sT1}')
for n in range(4):
    lab = None
    if n == 3:
        k(f's_cmp_lt_u32 s{sW}, 2')
        lab = k.begin_if('s_cbranch_scc0')
    k(f's_add_u32 s{sT1}, s{sW}, {4 * n}')
    k(f's_mul_i32 s{sT2}, s{sT1}, {32 * 3584}')
    k(f's_add_u32 s{sT2}, s{sT2}, s{sT0}')
    k(f's_mul_i32 s{sT1}, s{sT1}, 3072')
    for q in range(3):
        k(f's_add_u32 m0, s{sT1}, {L_A + 1024 * q}')
        tok['win2'] = k(f'buffer_load_dwordx4 v{16 + q}, {srd(SWIN)}, s{sT2} offen lds')
    if lab:
        k.end_if(lab)

k('v_min_u32 v3, 6, v0')
k('v_lshlrev_b32 v4, 7, v3')
k('v_lshlrev_b32 v3, 2, v3')
k(f's_lshl_b32 s{sT0}, s{sRB}, 1')
k(f's_lshr_b32 s{sT1}, s{sW}, 1')
k(f's_add_u32 s{sT0}, s{sT0}, s{sT1}')
k(f's_lshl_b32 s{sT1}, s{sT0}, 10')
k(f's_add_u32 s{sT1}, s{sT1}, {FGD}')
k(f's_lshl_b32 s{sT0}, s{sT0}, 7')
k(f's_add_u32 s{sT0}, s{sT0}, {FLD}')
k(f's_lshl_b32 s{sC0}, s{sRB}, 2')
k(f's_add_u32 s{sC0}, s{sC0}, s{sW}')
k(f's_mul_i32 s{sT2}, s{sC0}, {2 * 14336}')
k(f's_add_u32 s{sT2}, s{sT2}, {WS_Y}')
k(f's_add_u32 s{sT3}, s{sT2}, 14336')
k(f's_lshl_b32 s{sT4}, s{sC0}, 11')
k(f's_add_u32 s{sT4}, s{sT4}, {WS_ST1}')
k('v_lshrrev_b32 v2, 5, v0')
k('v_lshlrev_b32 v2, 10, v2')
k('v_and_b32 v5, 31, v0')
k('v_lshl_add_u32 v2, v5, 2, v2')
for t in range(4):
    k(f'v_add_u32 v{16 + t}, {L_B}, v{TA + t}')
YA = 24
ZA = 136
WB = 192


def w1_reads(m):
    out = []
    for t in range(4):
        for rho in range(2):
            out.append(f'ds_read_b64_tr_b16 {vr(WB + 16 * (m & 1) + 4 * t + 2 * rho, 2)}, v{16 + t} '
                       f'offset:{4096 * m + 2048 * rho}')
    return out


run(w1_reads(0))
poll(5, 3, sT0, 4, sT1)
stamp('y_flag')
for m in range(14):
    k(f'buffer_load_dwordx4 {vr(YA + 8 * m, 4)}, v7, {srd(SWS)}, s{sT2} offen offset:{1024 * (m & 3)} sc1')
    k(f'buffer_load_dwordx4 {vr(YA + 8 * m + 4, 4)}, v7, {srd(SWS)}, s{sT3} offen offset:{1024 * (m & 3)} sc1')
    if m & 3 == 3:
        k(f's_add_u32 s{sT2}, s{sT2}, 4096')
        k(f's_add_u32 s{sT3}, s{sT3}, 4096')
SS = 224
for cb in range(7):
    k(f'buffer_load_dword v{SS + cb}, v2, {srd(SWS)}, s{sT4} offen offset:{128 * cb} sc1')
for m in range(14):
    rd = w1_reads(m + 1) if m + 1 < 14 else []
    for t in range(4):
        for u in range(2):
            k(f'v_mfma_f32_16x16x32_bf16 {vr(ZA + 8 * t + 4 * u, 4)}, {vr(WB + 16 * (m & 1) + 4 * t, 4)}, '
              f'{vr(YA + 8 * m + 4 * u, 4)}, ' + ('0' if m == 0 else vr(ZA + 8 * t + 4 * u, 4)))
            run(rd[2 * t + u:2 * t + u + 1])
stamp('pass1')
k(f'v_add_f32 v{SS}, v{SS}, v{SS + 1}')
for cb in range(2, 7):
    k(f'v_add_f32 v{SS}, v{SS}, v{SS + cb}')
k(f'v_mul_f32 v{SS}, {hex(f2u(1.0 / 448))}, v{SS}')
k(f'v_mov_b32 v{SS + 4}, v{SS}')
k('v_lshrrev_b32 v1, 4, v0')
k('v_lshlrev_b32 v6, 5, v1')
k(f'v_add_u32 v6, {L_UV}, v6')
k(f'v_permlane16_swap_b32 v{SS}, v{SS + 4}')
k(f'v_fma_f32 v{SS + 4}, -v{SS}, v{SS}, v{SS + 4}')
k(f'v_max_f32 v{SS + 4}, 0, v{SS + 4}')
k(f'v_add_f32 v{SS + 4}, {hex(f2u(1e-5))}, v{SS + 4}')
k(f'v_rsq_f32 v{SS + 4}, v{SS + 4}')
k(f'v_mov_b32 v{SS + 2}, v{SS}')
k(f'v_mov_b32 v{SS + 6}, v{SS + 4}')
k(f'v_permlane32_swap_b32 v{SS}, v{SS + 2}')
k(f'v_permlane32_swap_b32 v{SS + 4}, v{SS + 6}')
K1 = 2.0 * math.sqrt(2.0 / math.pi) * LOG2E
k(f's_mov_b32 s{sC0 + 2}, {hex(f2u(-K1 * 0.044715))}')
k(f's_mov_b32 s{sC0 + 3}, {hex(f2u(-K1 * 0.044715))}')
k(f'v_mov_b32 v{SS + 8}, {hex(f2u(-K1))}')


def gelu_tiles(tiles):
    UVB = WB
    for n, t in enumerate(tiles):
        k(f'ds_read_b128 {vr(UVB + 8 * n, 4)}, v6 offset:{128 * t}')
        k(f'ds_read_b128 {vr(UVB + 8 * n + 4, 4)}, v6 offset:{128 * t + 16}')
    for n, t in enumerate(tiles):
        z = ZA + 8 * t
        for u in range(2):
            for q in range(2):
                a = vr(z + 4 * u + 2 * q, 2)
                k(f'v_pk_fma_f32 {a}, {vr(UVB + 8 * n + 2 * q, 2)}, {vr(SS + 2 * u, 2)}, {a} '
                  'op_sel_hi:[1,0,1] neg_lo:[0,1,0] neg_hi:[0,1,0]')
        for u in range(2):
            for q in range(2):
                a = vr(z + 4 * u + 2 * q, 2)
                k(f'v_pk_fma_f32 {a}, {a}, {vr(SS + 4 + 2 * u, 2)}, {vr(UVB + 8 * n + 4 + 2 * q, 2)} op_sel_hi:[1,0,1]')
        e = UVB + 8 * n
        for q in range(4):
            k(f'v_pk_mul_f32 {vr(e + 2 * q, 2)}, {vr(z + 2 * q, 2)}, {vr(z + 2 * q, 2)}')
        for q in range(4):
            k(f'v_pk_fma_f32 {vr(e + 2 * q, 2)}, {vr(e + 2 * q, 2)}, s[{sC0 + 2}:{sC0 + 3}], {vr(SS + 8, 2)} '
              'op_sel_hi:[1,1,0]')
        for q in range(4):
            k(f'v_pk_mul_f32 {vr(e + 2 * q, 2)}, {vr(e + 2 * q, 2)}, {vr(z + 2 * q, 2)}')
        for q in range(8):
            k(f'v_exp_f32 v{e + q}, v{e + q}')
        for q in range(4):
            k(f'v_pk_add_f32 {vr(e + 2 * q, 2)}, {vr(e + 2 * q, 2)}, 1.0 op_sel_hi:[1,0]')
        for q in range(8):
            k(f'v_rcp_f32 v{e + q}, v{e + q}')
        for q in range(4):
            k(f'v_pk_mul_f32 {vr(z + 2 * q, 2)}, {vr(z + 2 * q, 2)}, {vr(e + 2 * q, 2)}')


gelu_tiles([0, 1, 2, 3])
PS = 16
for u in range(2):
    z = ZA + 4 * u
    k(f'v_pk_add_f32 {vr(PS + 2 * u, 2)}, {vr(z, 2)}, {vr(z + 2, 2)}')
    k(f'v_pk_mul_f32 {vr(PS + 4 + 2 * u, 2)}, {vr(z, 2)}, {vr(z, 2)}')
    k(f'v_pk_fma_f32 {vr(PS + 4 + 2 * u, 2)}, {vr(z + 2, 2)}, {vr(z + 2, 2)}, {vr(PS + 4 + 2 * u, 2)}')


def acc_stats(t):
    for u in range(2):
        for q in range(2):
            z = vr(ZA + 8 * t + 4 * u + 2 * q, 2)
            k(f'v_pk_add_f32 {vr(PS + 2 * u, 2)}, {vr(PS + 2 * u, 2)}, {z}')
            k(f'v_pk_fma_f32 {vr(PS + 4 + 2 * u, 2)}, {z}, {z}, {vr(PS + 4 + 2 * u, 2)}')


acc_stats(1)
acc_stats(2)
k(f's_bitcmp0_b32 s{sH}, 0')
lab = k.begin_if('s_cbranch_scc0')
acc_stats(3)
k.end_if(lab)
for q in range(4):
    k(f'v_add_f32 v{PS + 2 * q}, v{PS + 2 * q}, v{PS + 2 * q + 1}')
k(f's_lshl_b32 s{sT3}, s{sC0}, 13')
k(f's_add_u32 s{sT3}, s{sT3}, {WS_ST2}')
k(f's_lshl_b32 s{sT1}, s{sH}, 9')
k(f's_add_u32 s{sT1}, s{sT1}, s{sT3}')
k(f'v_permlane16_swap_b32 v{PS}, v{PS + 2}')
k(f'v_permlane16_swap_b32 v{PS + 4}, v{PS + 6}')
k(f'v_add_f32 v{PS}, v{PS}, v{PS + 2}')
k(f'v_add_f32 v{PS + 4}, v{PS + 4}, v{PS + 6}')
k(f'v_mov_b32 v{PS + 2}, s{sTAG}')
k(f'v_mov_b32 v{PS + 3}, s{sTAG}')
k(f'v_permlane32_swap_b32 v{PS}, v{PS + 4}')
k(f'v_add_f32 v{PS}, v{PS}, v{PS + 4}')
k(f'v_mov_b32 v{PS + 1}, v{PS}')
k(f'v_permlane32_swap_b32 v{PS}, v{PS + 1}')
k('s_mov_b32 exec_hi, 0')
k(f'buffer_store_dwordx4 {vr(PS, 4)}, v7, {srd(SWS)}, s{sT1} offen sc1')
k('s_mov_b32 exec_hi, -1')
stamp('st2_pub')

k.barrier()
k('v_bfe_u32 v2, v0, 2, 2')
k('v_lshl_add_u32 v2, v1, 2, v2')
k('v_mul_u32_u24 v2, 96, v2')
k('v_and_b32 v3, 3, v0')
k('v_lshl_add_u32 v14, v3, 3, v2')


def w2_reads(m):
    out = []
    for t in range(3):
        for rho in range(2):
            out.append(f'ds_read_b64_tr_b16 {vr(WB + 16 * (m & 1) + 4 * t + 2 * rho, 2)}, v14 '
                       f'offset:{L_A + 3072 * m + 1536 * rho + 32 * t}')
    return out


run(w2_reads(0))
for m in range(14):
    rd = w2_reads(m + 1) if m + 1 < 14 else []
    for t in range(3):
        for u in range(2):
            k(f'v_mfma_f32_16x16x32_bf16 {vr(ZA + 8 * (4 + t) + 4 * u, 4)}, {vr(WB + 16 * (m & 1) + 4 * t, 4)}, '
              f'{vr(YA + 8 * m + 4 * u, 4)}, ' + ('0' if m == 0 else vr(ZA + 8 * (4 + t) + 4 * u, 4)))
            run(rd[2 * t + u:2 * t + u + 1])
k(f's_cmp_lt_u32 s{sW}, 3')
lab = k.begin_if('s_cbranch_scc0')
k(f's_lshl_b32 s{sT0}, s{sW}, 5')
k(f'v_add_u32 v2, s{sT0}, v14')
k(f's_lshl_b32 s{sT0}, s{sW}, 7')
k(f's_add_u32 s{sT0}, s{sT0}, 512')
uv_tile(2, 3072, 1536, sT0)
k.end_if(lab)
k.barrier()
stamp('pass2')

k('v_lshrrev_b32 v3, 3, v0')
k('v_and_b32 v4, 7, v0')
k('v_and_b32 v5, 6, v3')
k('v_xor_b32 v4, v4, v5')
k('v_mul_u32_u24 v3, 896, v3')
k('v_lshl_add_u32 v3, v4, 4, v3')
k(f's_mul_i32 s{sT4}, s{sW}, {28 * 8 * 896}')
k(f's_lshl_b32 s{sT5}, s{sCB}, 7')
k(f's_add_u32 s{sT4}, s{sT4}, s{sT5}')
k(f's_mul_i32 m0, s{sW}, {28 * 1024}')
for q in range(28):
    if q:
        k(f's_add_u32 s{sT4}, s{sT4}, {8 * 896}')
        k('s_add_u32 m0, m0, 1024')
    k(f'buffer_load_dwordx4 v3, {srd(SWOUT)}, s{sT4} offen lds')

gelu_tiles([4, 5, 6])
k(f's_lshr_b32 s{sT0}, s{sH}, 1')
k(f's_mul_i32 s{sC0 + 4}, s{sT0}, 7')
k(f's_and_b32 s{sT1}, s{sH}, 1')
k(f's_lshl_b32 s{sT1}, s{sT1}, 2')
k(f's_add_u32 s{sC0 + 4}, s{sC0 + 4}, s{sT1}')
k(f's_mul_i32 s{sT0}, s{sC0}, {2 * 56 * 512}')
k(f's_lshl_b32 s{sT1}, s{sC0 + 4}, 9')
k(f's_add_u32 s{sT0}, s{sT0}, s{sT1}')
k(f's_add_u32 s{sT0}, s{sT0}, {WS_Z1 - 512}')
k(f's_add_u32 s{sT1}, s{sT0}, {56 * 512}')
k('v_lshlrev_b32 v2, 3, v0')
ZP = 24


def z1_store(t):
    for u in range(2):
        z = ZA + 8 * t + 4 * u
        d = ZP + 4 * (t - 3) + 2 * u
        k(f'v_cvt_pk_bf16_f32 v{d}, v{z}, v{z + 1}')
        k(f'v_cvt_pk_bf16_f32 v{d + 1}, v{z + 2}, v{z + 3}')
        k(f'buffer_store_dwordx2 {vr(d, 2)}, v2, {srd(SWS)}, s{sT0 + u} offen offset:{512 * (t - 3)} sc1')


for t in (4, 5, 6):
    z1_store(t)
k(f's_bitcmp1_b32 s{sH}, 0')
lab = k.begin_if('s_cbranch_scc0')
z1_store(3)
k.end_if(lab)
stamp('z1_pub')

GS = 48
k(f's_add_u32 s{sT2}, s{sT3}, 4096')
k(f's_mov_b32 s{sCNT}, 0')
k.wait_vm0()
txt = 'L_PE:\n'
for q in range(8):
    txt += (f'buffer_load_dwordx4 {vr(GS + 4 * q, 4)}, v7, {srd(SWS)}, s{sT3 if q < 4 else sT2} offen '
            f'offset:{1024 * (q & 3)} sc1\n')
txt += f's_add_u32 s{sCNT}, s{sCNT}, 1\ns_waitcnt vmcnt(0)\n'
txt += f'v_xor_b32 v3, s{sTAG}, v{GS + 2}\n'
for q in range(1, 8):
    txt += f'v_xor_b32 v4, s{sTAG}, v{GS + 4 * q + 2}\nv_or_b32 v3, v3, v4\n'
txt += f'''v_cmp_ne_u32 vcc, 0, v3
    s_cbranch_vccz L_PED
    s_cmp_lt_u32 s{sCNT}, 0x40000
    s_cbranch_scc1 L_PE
L_PED:'''
k.raw(txt)
k.assume_vm0()
stamp('st2_got')
for q in range(1, 8):
    k(f'v_pk_add_f32 {vr(GS, 2)}, {vr(GS, 2)}, {vr(GS + 4 * q, 2)}')
k(f'v_permlane32_swap_b32 v{GS}, v{GS + 1}')
k(f'v_add_f32 v{GS}, v{GS}, v{GS + 1}')
k(f'v_mul_f32 v{GS}, {hex(f2u(1.0 / 896))}, v{GS}')
k(f'v_mov_b32 v{GS + 4}, v{GS}')
k(f'v_permlane32_swap_b32 v{GS}, v{GS + 4}')
k(f'v_fma_f32 v{GS + 4}, -v{GS}, v{GS}, v{GS + 4}')
k(f'v_max_f32 v{GS + 4}, 0, v{GS + 4}')
k(f'v_add_f32 v{GS + 4}, {hex(f2u(1e-5))}, v{GS + 4}')
k(f'v_rsq_f32 v{GS + 4}, v{GS + 4}')
k(f'v_mul_f32_e64 v{GS}, -v{GS}, v{GS + 4}')
k(f'v_mov_b32 v{GS + 6}, v{GS + 4}')
k(f'v_mov_b32 v{GS + 2}, v{GS}')
k(f'v_permlane16_swap_b32 v{GS + 4}, v{GS + 6}')
k(f'v_permlane16_swap_b32 v{GS}, v{GS + 2}')
k('v_and_b32 v3, 15, v0')
k(f'v_mul_u32_u24 v3, {PHI_STRIDE}, v3')
k('v_lshl_add_u32 v3, v1, 3, v3')
k(f'v_add_u32 v3, s{sSLOT}, v3')
k('v_bfe_u32 v4, v0, 2, 2')
k('v_lshl_add_u32 v4, v1, 3, v4')
k(f'v_mul_u32_u24 v4, {PHI_STRIDE}, v4')
k('v_and_b32 v5, 3, v0')
k('v_lshl_add_u32 v4, v5, 3, v4')
k(f'v_add_u32 v4, s{sSLOT}, v4')
NP = 64
for t in range(4):
    for u in range(2):
        z = ZA + 8 * t + 4 * u
        for q in range(2):
            k(f'v_pk_fma_f32 {vr(z + 2 * q, 2)}, {vr(z + 2 * q, 2)}, {vr(GS + 4 + 2 * u, 2)}, {vr(GS + 2 * u, 2)} '
              'op_sel_hi:[1,0,0]')
        d = NP + 4 * t + 2 * u
        k(f'v_cvt_pk_bf16_f32 v{d}, v{z}, v{z + 1}')
        k(f'v_cvt_pk_bf16_f32 v{d + 1}, v{z + 2}, v{z + 3}')
for t in range(4):
    for u in range(2):
        k(f'ds_write_b64 v3, {vr(NP + 4 * t + 2 * u, 2)} offset:{16 * u * PHI_STRIDE + 32 * t}')
for t in range(4):
    for rho in range(2):
        k(f'ds_read_b64_tr_b16 {vr(80 + 4 * t + 2 * rho, 2)}, v4 offset:{4 * rho * PHI_STRIDE + 32 * t}')
k(f's_lshl_b32 s{sT0}, s{sC0 + 4}, 16')
k(f's_lshl_b32 s{sT1}, s{sC0}, 10')
k(f's_add_u32 s{sT0}, s{sT0}, s{sT1}')
k(f's_add_u32 s{sT0}, s{sT0}, {WS_Z2}')
for t in range(3):
    st = k(f'buffer_store_dwordx4 {vr(80 + 4 * t, 4)}, v7, {srd(SWS)}, s{sT0} offen sc1')
    k(f's_add_u32 s{sT0}, s{sT0}, 65536')
k(f's_bitcmp0_b32 s{sH}, 0')
lab = k.begin_if('s_cbranch_scc0')
st = k(f'buffer_store_dwordx4 {vr(92, 4)}, v7, {srd(SWS)}, s{sT0} offen sc1')
k.end_if(lab)
k(f's_lshl_b32 s{sT3}, s{sRB}, 4')
k(f's_add_u32 s{sT3}, s{sT3}, s{sH}')
k(f's_lshl_b32 s{sT3}, s{sT3}, 7')
k(f's_add_u32 s{sT3}, s{sT3}, {FGF}')
k.wait_lgkm0()
publish(st, 2, None, sT3)
stamp('z2_pub')
finish_early(3)

k('v_and_b32 v2, 15, v0')
k('v_xor_b32 v3, v2, v1')
k('v_lshlrev_b32 v3, 4, v3')
k('v_lshl_add_u32 v3, v1, 12, v3')
for q in range(4):
    k(f'v_xor_b32 v{16 + q}, {64 * q}, v3')
    if q:
        k(f'v_add_u32 v{16 + q}, {q * 4 * 4096}, v{16 + q}')
k('v_xor_b32 v3, v2, v1')
k('v_lshlrev_b32 v3, 4, v3')
k('v_lshl_add_u32 v3, v2, 8, v3')
for sg in range(4):
    k(f'v_xor_b32 v{20 + sg}, {64 * sg}, v3')
    k(f'v_add_u32 v{20 + sg}, s{sSLOT}, v{20 + sg}')
wtok = {}


def wsp_issue(bt):
    mu, beta = bt >> 2, bt & 3
    k(f's_add_u32 s{sT0}, s{sW}, {mu}')
    k(f's_and_b32 s{sT0}, s{sT0}, 3')
    k(f's_lshl_b32 s{sT1}, s{sTB}, 2')
    k(f's_add_u32 s{sT0}, s{sT0}, s{sT1}')
    k(f's_lshl_b32 s{sT0}, s{sT0}, 16')
    k(f's_lshl_b32 s{sT1}, s{sW}, 10')
    k(f's_add_u32 s{sT0}, s{sT0}, s{sT1}')
    k(f's_add_u32 s{sT0}, s{sT0}, {256 * beta}')
    for q in range(4):
        k(f's_add_u32 m0, s{sSLOT}, {4096 * (bt & 1) + 1024 * q}')
        wtok[bt] = k(f'buffer_load_dwordx4 v{16 + q}, {srd(SWSP)}, s{sT0} offen lds')


def wsp_read(bt):
    mu, beta = bt >> 2, bt & 3
    k.wait_vm(wtok[bt])
    for sg in range(4):
        k(f'ds_read_b128 {ar((mu * 16 + 4 * beta + sg) * 4, 4)}, v{20 + sg} offset:{4096 * (bt & 1)}')
    k.wait_lgkm0()


wsp_issue(0)
wsp_issue(1)
for bt in range(16):
    wsp_read(bt)
    if bt + 2 < 16:
        wsp_issue(bt + 2)
stamp('wsp')

k(f's_lshl_b32 s{sC0}, s{sTB}, 2')
k(f's_add_u32 s{sC0}, s{sC0}, s{sW}')
k('v_lshlrev_b32 v3, 1, v2')
k(f's_lshl_b32 s{sT0}, s{sC0}, 5')
k(f'buffer_load_ushort v15, v3, {srd(SBSP)}, s{sT0} offen')
k('v_bfe_u32 v3, v0, 1, 2')
k('v_lshlrev_b32 v3, 11, v3')
k('v_and_b32 v4, 1, v0')
k('v_lshl_add_u32 v3, v4, 7, v3')
k(f's_lshl_b32 s{sT0}, s{sW}, 13')
k(f's_lshl_b32 s{sT1}, s{sCB}, 8')
k(f's_add_u32 s{sT0}, s{sT0}, s{sT1}')
k(f's_add_u32 s{sT0}, s{sT0}, {FGF}')
sF = sC0 + 2
k(f's_mul_i32 s{sT1}, s{sCB}, 7')
k(f's_and_b32 s{sT2}, s{sCB}, 1')
k(f's_add_u32 s{sF}, s{sT1}, s{sT2}')
for lam in range(1, 6):
    k(f's_add_u32 s{sF + lam}, s{sF}, {lam}')
k(f's_cmp_eq_u32 s{sT2}, 0')
k(f's_cselect_b32 s{sT2}, 6, 0')
k(f's_add_u32 s{sF + 6}, s{sT1}, s{sT2}')
k(f'v_add_u32 v16, s{sSLOT}, v7')
for mu in range(1, 4):
    k(f's_sub_u32 s{sT1}, s{sW}, {mu}')
    k(f's_and_b32 s{sT1}, s{sT1}, 3')
    k(f's_lshl_b32 s{sT1}, s{sT1}, 13')
    k(f's_add_u32 s{sT1}, s{sT1}, {L_SLOT + 1024 * mu}')
    k(f'v_add_u32 v{16 + mu}, s{sT1}, v7')
k('v_lshlrev_b32 v20, 3, v0')
sZB, sZ1, sUB, sLD = sC0 + 10, sC0 + 11, sC0 + 12, sC0 + 13
k(f's_lshl_b32 s{sZB}, s{sW}, 14')
k(f's_add_u32 s{sZB}, s{sZB}, {WS_Z2}')
k(f's_mul_i32 s{sZ1}, s{sC0}, {56 * 512}')
k(f's_add_u32 s{sZ1}, s{sZ1}, {WS_Z1}')
k(f's_mul_i32 s{sUB}, s{sC0}, {28 * 1024}')
k(f's_add_u32 s{sUB}, s{sUB}, {WS_U}')
poll(5, None, None, 3, sT0)
k('v_lshlrev_b32 v14, 16, v15')
stamp('z2_flag')
NB = 16
BR = 64
PA = 128
RD = 160
Z1R = 172
UP = 188
LOOK = 12


def b_load(n):
    lam, s = n >> 4, n & 15
    if s == 0:
        k(f's_lshl_b32 s{sLD}, s{sF + lam}, 16')
        k(f's_add_u32 s{sLD}, s{sLD}, s{sZB}')
    elif s & 3 == 0:
        k(f's_add_u32 s{sLD}, s{sLD}, 4096')
    k(f'buffer_load_dwordx4 {vr(BR + 4 * (n % NB), 4)}, v7, {srd(SWS)}, s{sLD} offen offset:{1024 * (s & 3)} sc1')


ust = [None]


def finalize(lam):
    a = PA + 16 * (lam & 1)
    it = []
    it.append('\n'.join(f'ds_read_b128 {vr(RD + 4 * (mu - 1), 4)}, v{16 + mu} offset:{4096 * (lam & 1)}'
                        for mu in range(1, 4)))
    z = Z1R + 2 * lam
    it += [f'v_lshlrev_b32 v192, 16, v{z}', f'v_and_b32 v193, 0xffff0000, v{z}',
           f'v_lshlrev_b32 v194, 16, v{z + 1}', f'v_and_b32 v195, 0xffff0000, v{z + 1}']
    for q in range(4):
        it.append(f'v_add_f32 v{a + q}, v14, v{a + q}')
    for mu in range(3):
        for q in range(4):
            it.append(f'v_add_f32 v{a + q}, v{a + q}, v{RD + 4 * mu + q}')
    for q in range(4):
        it.append(f'v_mul_f32 v{a + q}, v{a + q}, v{192 + q}')
    d = UP + 2 * (lam & 1)
    it += [f'v_cvt_pk_bf16_f32 v{d}, v{a}, v{a + 1}', f'v_cvt_pk_bf16_f32 v{d + 1}, v{a + 2}, v{a + 3}']

    def st_():
        k(f's_lshr_b32 s{sT0}, s{sF + lam}, 1')
        k(f's_lshl_b32 s{sT0}, s{sT0}, 10')
        k(f's_add_u32 s{sT0}, s{sT0}, s{sUB}')
        if lam == 6:
            k(f's_and_b32 s{sT1}, s{sCB}, 1')
            k(f's_lshl_b32 s{sT1}, s{sT1}, 3')
            k(f's_add_u32 s{sT0}, s{sT0}, s{sT1}')
            ust[0] = k(f'buffer_store_dwordx2 {vr(UP, 2)}, v7, {srd(SWS)}, s{sT0} offen sc1')
        else:
            ust[0] = k(f'buffer_store_dwordx4 {vr(UP, 4)}, v7, {srd(SWS)}, s{sT0} offen sc1')
    if lam & 1 or lam == 6:
        it.append(st_)
    return it


def z1_loads():
    for lam in range(7):
        k(f's_lshl_b32 s{sT0}, s{sF + lam}, 9')
        k(f's_add_u32 s{sT0}, s{sT0}, s{sZ1}')
        k(f'buffer_load_dwordx2 {vr(Z1R + 2 * lam, 2)}, v20, {srd(SWS)}, s{sT0} offen sc1')


def spill(lam):
    a = PA + 16 * (lam & 1)
    return '\n'.join(f'ds_write_b128 v16, {vr(a + 4 * mu, 4)} offset:{4096 * (lam & 1) + 1024 * mu}'
                     for mu in range(1, 4))


for n in range(LOOK):
    b_load(n)
for lam in range(7):
    a = PA + 16 * (lam & 1)
    side = []
    for s in range(16):
        n = 16 * lam + s
        if lam > 0:
            if s == 2:
                k(spill(lam - 1))
            if s == 4:
                k.barrier()
                if lam == 1:
                    z1_loads()
            if s == (10 if lam == 1 else 5):
                side = finalize(lam - 1)
        for mu in range(4):
            k(f'v_mfma_f32_16x16x32_bf16 {vr(a + 4 * mu, 4)}, {vr(BR + 4 * (n % NB), 4)}, '
              f'{ar((mu * 16 + s) * 4, 4)}, ' + ('0' if s == 0 else vr(a + 4 * mu, 4)))
            if mu == 0 and n + LOOK < 112:
                b_load(n + LOOK)
            elif side:
                run(side[:2])
                side = side[2:]
    run(side)
stamp('p3_gemm')
k(spill(6))
k.barrier()
run(finalize(6))
k(f's_lshl_b32 s{sT2}, s{sTB}, 7')
k(f's_add_u32 s{sT4}, s{sT2}, {FLG}')
k(f's_lshl_b32 s{sT3}, s{sCB}, 2')
k(f's_add_u32 s{sT2}, s{sT4}, s{sT3}')
k(f's_lshl_b32 s{sT5}, s{sTB}, 10')
k(f's_add_u32 s{sT5}, s{sT5}, {FGG}')
k(f's_lshl_b32 s{sT3}, s{sCB}, 7')
k(f's_add_u32 s{sT3}, s{sT3}, s{sT5}')
publish(ust[0], 2, sT2, sT3)
stamp('u_pub')
k(f's_or_b32 s{sT0}, s2, s{sW}')
k(f's_cmp_eq_u32 s{sT0}, 0')
lab = k.begin_if('s_cbranch_scc0')
k(f'v_mov_b32 v2, s{sTAG}')
k('s_mov_b64 exec, 1')
k(f'buffer_store_dword v2, off, {srd(SWS)}, 0 sc1')
k('s_mov_b64 exec, -1')
k.end_if(lab)
finish_early(4)

k(f's_cmp_lt_u32 s{sCB}, 7')
lab_p4 = k.begin_if('s_cbranch_scc0')
k('v_and_b32 v3, 7, v0')
k('v_lshlrev_b32 v4, 7, v3')
k('v_lshlrev_b32 v3, 2, v3')
for t in range(4):
    k(f'v_add_u32 v{12 + t}, 57344, v{TA + t}')
k(f's_lshl_b32 s{sT1}, s{sCB}, 7')
k(f'v_lshl_add_u32 v2, v1, 4, s{sT1}')
k(f'v_add_u32 v2, {L_VECP}, v2')
GB = 232
for p in range(2):
    k(f'ds_read_b128 {vr(GB + 4 * p, 4)}, v2 offset:{2688 + 64 * p}')
UA = 16
WB = 128
AC = 192


def wout_reads(m):
    out = []
    for t in range(4):
        for rho in range(2):
            out.append(f'ds_read_b64_tr_b16 {vr(WB + 16 * (m & 3) + 4 * t + 2 * rho, 2)}, '
                       f'v{(TA if m < 14 else 12) + t} offset:{4096 * (m % 14) + 2048 * rho}')
    return out


for m in range(3):
    run(wout_reads(m))
poll(5, 3, sT4, 4, sT5)
stamp('u_flag')
for m in range(28):
    k(f'buffer_load_dwordx4 {vr(UA + 4 * m, 4)}, v7, {srd(SWS)}, s{sUB} offen offset:{1024 * (m & 3)} sc1')
    if m & 3 == 3 and m < 27:
        k(f's_add_u32 s{sUB}, s{sUB}, 4096')
k('v_and_b32 v2, 15, v0')
k('v_mul_u32_u24 v2, 896, v2')
k('v_bfe_u32 v3, v0, 4, 1')
k('v_lshl_add_u32 v2, v3, 5, v2')
k('v_lshrrev_b32 v3, 5, v0')
k('v_lshl_add_u32 v2, v3, 4, v2')
k(f's_mul_i32 s{sT0}, s{sC0}, {16 * 896}')
k(f's_add_u32 s{sT0}, s{sT0}, s{sT1}')
for q in range(8):
    unpack(208 + 2 * q, 209 + 2 * q, GB + q)
for m in range(28):
    rd = wout_reads(m + 3) if m + 3 < 28 else []
    for t in range(4):
        k(f'v_mfma_f32_16x16x32_bf16 {vr(AC + 4 * t, 4)}, {vr(WB + 16 * (m & 3) + 4 * t, 4)}, {vr(UA + 4 * m, 4)}, '
          + ('0' if m == 0 else vr(AC + 4 * t, 4)))
        run(rd[2 * t:2 * t + 2])
stamp('p4_gemm')
for q in range(8):
    unpack(224 + 2 * q, 225 + 2 * q, X1 + q)
for q in range(8):
    k(f'v_pk_fma_f32 {vr(224 + 2 * q, 2)}, {vr(AC + 2 * q, 2)}, {vr(208 + 2 * q, 2)}, {vr(224 + 2 * q, 2)}')
for q in range(8):
    k(f'v_cvt_pk_bf16_f32 v{16 + q}, v{224 + 2 * q}, v{225 + 2 * q}')
for p in range(2):
    k(f'v_permlane16_swap_b32 v{16 + 4 * p}, v{18 + 4 * p}')
    k(f'v_permlane16_swap_b32 v{17 + 4 * p}, v{19 + 4 * p}')
for p in range(2):
    k(f'buffer_store_dwordx4 {vr(16 + 4 * p, 4)}, v2, {srd(SOUT)}, s{sT0} offen offset:{64 * p}')
k.end_if(lab_p4)
k('L_END:')
if PROF:
    stamp('end')
    k.wait_vm0()
    stamp('drained')
    k(f's_lshl_b32 s{sT0}, s2, 2')
    k(f's_add_u32 s{sT0}, s{sT0}, s{sW}')
    k(f's_lshl_b32 s{sT0}, s{sT0}, 8')
    k(f's_add_u32 s{sT0}, s{sT0}, {WS_DBG}')
    k('v_lshlrev_b32 v2, 2, v0')
    k(f'buffer_store_dword v255, v2, {srd(SWS)}, s{sT0} offen')
k('L_EXIT:')
k('s_endpgm')
k('L_CODE_END:')

body = k.finish()
ref = open(os.path.join(os.path.dirname(os.path.abspath(__file__)), '..', 'cdna_kernels', NAME + '.s.ref')).read()
head = ref[:ref.index('; Override launch geometry')]
out = head + f'''; One persistent launch: 256 workgroups (one per CU) x 4 waves; phases hand data over through d_ws with tagged flags.
; @launch grid=(256,1,1) block=(256,1,1) lds={LDS_BYTES}
.amdgcn_target "amdgcn-amd-amdhsa--gfx950"
.text
.globl {NAME}_kernel
.p2align 8
.type {NAME}_kernel,@function
{NAME}_kernel:
''' + body + f'''.section .rodata,"a"
.p2align 6
.amdhsa_kernel {NAME}_kernel
  .amdhsa_next_free_vgpr 512
  .amdhsa_next_free_sgpr 96
  .amdhsa_accum_offset 256
  .amdhsa_group_segment_fixed_size 0
  .amdhsa_kernarg_size 112
  .amdhsa_user_sgpr_count 2
  .amdhsa_user_sgpr_kernarg_segment_ptr 1
  .amdhsa_system_sgpr_workgroup_id_x 1
  .amdhsa_float_denorm_mode_32 3
.end_amdhsa_kernel
'''
dst = sys.argv[1] if len(sys.argv) > 1 else os.path.join(os.path.dirname(os.path.abspath(__file__)), '..',
                                                       'cdna_kernels', NAME + '.s')
open(dst, 'w').write(out)
if PROF:
    open(dst + '.stamps', 'w').write('\n'.join(stamp_names))
print('wrote', dst, 'instructions:', sum(1 for i in k.ins if i.kind != 'pseudo'))
```

```python
import re

_REG = re.compile(r'(?<![\w.])([vas])(?:(\d+)|\[(\d+):(\d+)\])(?![\w])')


def regs_of(op):
    out = set()
    op = op.strip()
    for m in _REG.finditer(op):
        c = m.group(1)
        if m.group(2) is not None:
            out.add((c, int(m.group(2))))
        else:
            for i in range(int(m.group(3)), int(m.group(4)) + 1):
                out.add((c, i))
    if re.search(r'\bvcc(_lo|_hi)?\b', op):
        out.add(('x', 'vcc'))
    if re.search(r'\bexec(_lo|_hi)?\b', op):
        out.add(('x', 'exec'))
    if re.search(r'\bm0\b', op):
        out.add(('x', 'm0'))
    return out


def split_ops(s):
    ops, depth, cur = [], 0, ''
    for ch in s:
        if ch in '[(':
            depth += 1
        if ch in '])':
            depth -= 1
        if ch == ',' and depth == 0:
            ops.append(cur.strip())
            cur = ''
        else:
            cur += ch
    if cur.strip():
        ops.append(cur.strip())
    return ops


TRANS = ('v_exp_f32', 'v_log_f32', 'v_rcp_f32', 'v_rsq_f32', 'v_sqrt_f32', 'v_sin_f32', 'v_cos_f32')


class Ins:
    __slots__ = ('text', 'mn', 'kind', 'rd', 'wr', 'region', 'tok', 'srcC', 'srcAB', 'passes', 'data', 'lds',
                 'dpp', 'raw', 'dppsrc', 'pos', 'age', 'nopad')

    def __init__(self, text, region):
        self.text = text
        self.region = region
        self.tok = None
        self.rd, self.wr = set(), set()
        self.srcC, self.srcAB, self.data, self.dppsrc = set(), set(), set(), set()
        self.passes = 0
        self.lds = False
        self.dpp = False
        self.raw = False
        self.pos = 0
        self.age = 10 ** 9
        self.nopad = False
        t = text.split(';')[0].strip()
        if t.endswith(':') or t.startswith('.') or not t:
            self.mn, self.kind = t, 'pseudo'
            return
        sp = t.split(None, 1)
        mn = sp[0]
        self.mn = mn
        rest = sp[1] if len(sp) > 1 else ''
        ops = split_ops(rest)
        R = [regs_of(o) for o in ops]
        base = re.sub(r'_(e32|e64|dpp|sdwa)$', '', mn)
        if mn.startswith('v_mfma'):
            self.kind = 'mfma'
            self.wr = R[0]
            self.srcAB = R[1] | R[2]
            self.srcC = R[3]
            self.rd = self.srcAB | self.srcC
            self.passes = 8 if '32x32x16' in mn else 4
            assert '32x32x16' in mn or '16x16x32' in mn, mn
        elif mn.startswith('v_'):
            self.kind = 'trans' if base in TRANS else 'valu'
            self.dpp = mn.endswith('_dpp')
            if base.startswith('v_permlane'):
                self.kind = 'perm'
                self.wr = R[0] | R[1]
                self.rd = R[0] | R[1]
            elif base.startswith('v_cmp'):
                self.wr = R[0]
                self.rd = set().union(*R[1:])
            elif base in ('v_add_co_u32', 'v_addc_co_u32', 'v_sub_co_u32'):
                self.wr = R[0] | R[1]
                self.rd = set().union(*R[2:])
            else:
                self.wr = R[0]
                self.rd = set().union(*R[1:]) if len(R) > 1 else set()
                if base in ('v_fmac_f32', 'v_dot2c_f32_bf16', 'v_writelane_b32') or self.dpp:
                    self.rd |= R[0]
                if self.dpp:
                    self.dppsrc = R[1]
            if base in ('v_readfirstlane_b32', 'v_readlane_b32'):
                self.kind = 'rdlane'
        elif mn.startswith('ds_'):
            self.kind = 'ds'
            if mn.startswith('ds_read') or mn.startswith('ds_bpermute') or mn.startswith('ds_swizzle'):
                self.wr = R[0]
                self.rd = set().union(*R[1:])
            else:
                self.rd = set().union(*R)
                self.data = set().union(*R[1:])
        elif mn.startswith('buffer_') or mn.startswith('global_'):
            self.kind = 'vmem'
            self.lds = bool(re.search(r'\blds\b', rest)) or '_lds_' in mn
            if self.lds:
                self.rd = set().union(*R) | {('x', 'm0')}
            elif '_load' in mn:
                self.wr = R[0]
                self.rd = set().union(*R[1:])
                if 'd16' in mn:
                    self.rd |= set()
            elif mn.startswith('buffer_store'):
                self.rd = set().union(*R)
                self.data = R[0]
            elif mn.startswith('global_store'):
                self.rd = set().union(*R)
                self.data = R[1]
            else:
                raise ValueError(text)
        elif mn.startswith('s_load') or mn.startswith('s_buffer_load') or mn in ('s_memtime', 's_memrealtime'):
            self.kind = 'smem'
            self.wr = R[0]
            self.rd = set().union(*R[1:]) if len(R) > 1 else set()
        elif mn.startswith('s_'):
            self.kind = 'salu'
            if mn in ('s_waitcnt', 's_nop', 's_barrier', 's_sleep', 's_setprio', 's_endpgm', 's_branch') or \
                    mn.startswith('s_cbranch'):
                self.kind = 'sopp'
                if 'vcc' in mn:
                    self.rd = {('x', 'vcc')}
                if 'exec' in mn:
                    self.rd = {('x', 'exec')}
            elif mn.startswith('s_cmp') or mn.startswith('s_bitcmp'):
                self.rd = set().union(*R)
            else:
                self.wr = R[0]
                self.rd = set().union(*R[1:]) if len(R) > 1 else set()
                if 'saveexec' in mn:
                    self.wr |= {('x', 'exec')}
                if mn in ('s_addk_i32', 's_mulk_i32'):
                    self.rd |= R[0]
        else:
            raise ValueError('unknown instruction ' + text)

    def isvalu(self):
        return self.kind in ('valu', 'trans', 'perm', 'rdlane')

    def states(self):
        if self.kind == 'pseudo':
            return 0
        if self.mn == 's_nop':
            return int(self.text.split()[1]) + 1
        return 1


def is_prefix(a, b):
    return len(a) <= len(b) and b[:len(a)] == a


class K:
    def __init__(self):
        self.ins = []
        self.region = ()
        self.nreg = 0
        self.nlab = 0
        self.age = 24
        self.nopad = False
        self.tail = []

    def __call__(self, text):
        last = None
        for line in text.split('\n'):
            line = line.strip()
            if not line:
                continue
            last = Ins(line, self.region)
            last.age = self.age
            last.nopad = self.nopad
            self.ins.append(last)
        return last

    def raw(self, text):
        for line in text.split('\n'):
            line = line.strip()
            if not line:
                continue
            i = Ins(line, self.region)
            i.raw = True
            self.ins.append(i)

    def _pseudo(self, name, tok=None):
        i = Ins('', self.region)
        i.mn = name
        i.tok = tok
        self.ins.append(i)

    def wait_vm(self, tok):
        self._pseudo('@waitvm', tok)

    def wait_vm0(self):
        self._pseudo('@waitvm0')

    def wait_lgkm0(self):
        self._pseudo('@waitlgkm0')

    def assume_vm0(self):
        self._pseudo('@vm0')

    def barrier(self):
        self._pseudo('@waitlgkm0')
        self('s_barrier')

    def label(self, base='L'):
        self.nlab += 1
        return f'{base}_{self.nlab}'

    def begin_if(self, branch_if_skip):
        lab = self.label('SK')
        self(f'{branch_if_skip} {lab}')
        self.nreg += 1
        self.region = self.region + (self.nreg,)
        self._pseudo('@enter')
        return lab

    def end_if(self, lab):
        self._pseudo('@leave')
        self.region = self.region[:-1]
        self(f'{lab}:')

    def pass_wait(self):
        out = []
        vm, lg = [], []
        stack = []

        def count_after(q, idx, region):
            return sum(1 for y in q[idx + 1:] if is_prefix(y.region, region))

        def emit_wait(region, nv=None, nl=None):
            parts = []
            if nv is not None:
                parts.append(f'vmcnt({min(nv, 63)})')
            if nl is not None:
                parts.append(f'lgkmcnt({min(nl, 15)})')
            out.append(Ins('s_waitcnt ' + ' '.join(parts), region))

        for i in self.ins:
            if i.kind == 'pseudo':
                if i.mn == '@waitvm':
                    if i.tok in vm:
                        idx = vm.index(i.tok)
                        emit_wait(i.region, nv=count_after(vm, idx, i.region))
                        del vm[:idx + 1]
                elif i.mn == '@waitvm0':
                    if vm:
                        emit_wait(i.region, nv=0)
                        vm.clear()
                elif i.mn == '@waitlgkm0':
                    if lg:
                        emit_wait(i.region, nl=0)
                        lg.clear()
                elif i.mn == '@vm0':
                    vm.clear()
                elif i.mn == '@enter':
                    stack.append((list(vm), list(lg)))
                elif i.mn == '@leave':
                    svm, slg = stack.pop()
                    vm[:] = svm + [y for y in vm if y not in svm]
                    lg[:] = slg + [y for y in lg if y not in slg]
                else:
                    out.append(i)
                continue
            if i.raw:
                out.append(i)
                continue
            touch = i.rd | i.wr
            nv = nl = None
            idx = -1
            for n, y in enumerate(vm):
                if y.wr & touch:
                    if i.kind == 'vmem' and not (y.wr & i.rd):
                        continue
                    idx = n
            if idx >= 0:
                nv = count_after(vm, idx, i.region)
                del vm[:idx + 1]
            idx = -1
            for n, y in enumerate(lg):
                if y.wr & touch:
                    if i.kind == 'ds' and y.kind == 'ds' and not (y.wr & i.rd):
                        continue
                    idx = n
            if idx >= 0:
                if any(y.kind == 'smem' for y in lg):
                    nl = 0
                    lg.clear()
                else:
                    while idx + 1 < len(lg) and len(out) - lg[idx + 1].pos >= i.age:
                        idx += 1
                    nl = count_after(lg, idx, i.region)
                    del lg[:idx + 1]
            if nv is not None or nl is not None:
                emit_wait(i.region, nv, nl)
            if i.mn == 's_waitcnt':
                m = re.search(r'vmcnt\((\d+)\)', i.text)
                if m and int(m.group(1)) == 0:
                    vm.clear()
                m = re.search(r'lgkmcnt\((\d+)\)', i.text)
                if m and int(m.group(1)) == 0:
                    lg.clear()
            i.pos = len(out)
            out.append(i)
            if i.kind == 'vmem':
                vm.append(i)
            elif i.kind in ('ds', 'smem'):
                lg.append(i)
        self.ins = out

    @staticmethod
    def need(p, c):
        n = 0
        V = lambda s: {r for r in s if r[0] in 'va'}
        S = lambda s: {r for r in s if r[0] == 's' or r == ('x', 'vcc')}
        if p.isvalu():
            pw = V(p.wr)
            if c.kind == 'mfma' and pw & c.rd:
                n = max(n, 2)
            if c.kind == 'perm' and pw & c.rd:
                n = max(n, 2)
            if c.dpp and pw & c.dppsrc:
                n = max(n, 2)
            if c.kind == 'rdlane' and pw & c.rd:
                n = max(n, 1)
            if p.kind == 'trans' and c.isvalu() and c.kind != 'trans' and pw & c.rd:
                n = max(n, 1)
            if p.kind == 'trans' and c.kind in ('trans', 'vmem', 'ds') and pw & c.rd:
                n = max(n, 1)
            sw = S(p.wr)
            if sw:
                if c.isvalu() and sw & c.rd:
                    n = max(n, 4 if c.kind == 'rdlane' else 2)
                if c.kind == 'vmem' and sw & c.rd:
                    n = max(n, 5)
                if c.kind in ('salu', 'smem') and sw & c.rd:
                    n = max(n, 1)
        if p.kind == 'mfma':
            big = 12 if p.passes == 8 else 8
            if c.kind == 'mfma':
                if p.wr & c.srcAB:
                    n = max(n, big)
                if p.wr & c.srcC:
                    if not (p.wr == c.srcC and p.passes == c.passes):
                        n = max(n, 10 if p.passes == 8 else 6)
                elif p.wr & c.wr:
                    n = max(n, big)
            elif c.isvalu() or c.kind in ('vmem', 'ds'):
                if p.wr & (c.rd | c.wr):
                    n = max(n, big)
                if p.srcC & c.wr:
                    n = max(n, 7 if p.passes == 8 else 3)
        if p.kind == 'salu' and ('x', 'm0') in p.wr and c.kind == 'vmem' and c.lds:
            n = max(n, 1)
        if p.kind == 'vmem' and len(p.data) >= 3 and p.data & c.wr:
            n = max(n, 2)
        if p.kind == 'ds' and len(p.data) >= 3 and p.data & c.wr:
            n = max(n, 2)
        return n

    def pass_hazard(self):
        out = []
        for c in self.ins:
            if c.kind != 'pseudo':
                dist = 0
                pad = 0
                seen = 0
                for p in reversed(out):
                    if p.kind == 'pseudo':
                        continue
                    n = self.need(p, c)
                    if n > dist:
                        pad = max(pad, n - dist)
                    if is_prefix(p.region, c.region):
                        dist += p.states()
                    seen += 1
                    if dist >= 13 or seen > 400:
                        break
                if pad:
                    out.append(Ins(f's_nop {pad - 1}', c.region))
            out.append(c)
        self.ins = out

    def text(self):
        lines = []
        for i in self.ins:
            if i.kind == 'pseudo' and not i.text:
                continue
            lines.append(i.text if i.text.endswith(':') or i.text.startswith('.') else '    ' + i.text)
        return '\n'.join(lines) + '\n'

    def pass_align(self, minrun=5):
        import subprocess, tempfile, os
        d = tempfile.mkdtemp()
        open(d + '/a.s', 'w').write('.amdgcn_target "amdgcn-amd-amdhsa--gfx950"\n.text\n' + self.text())
        subprocess.run(['clang', '-x', 'assembler', '-target', 'amdgcn-amd-amdhsa', '-mcpu=gfx950',
                        '-c', d + '/a.s', '-o', d + '/a.o'], check=True)
        dis = subprocess.run(['llvm-objdump', '-d', '--mcpu=gfx950', d + '/a.o'],
                             capture_output=True, text=True, check=True).stdout
        sizes = []
        for line in dis.split('\n'):
            m = re.search(r'// [0-9A-F]{12}: ((?:[0-9A-F]{8} ?)+)', line)
            if m:
                sizes.append(4 * len(m.group(1).split()))
        real = [i for i in self.ins if i.kind != 'pseudo']
        assert len(real) == len(sizes), (len(real), len(sizes))
        size = {id(i): n for i, n in zip(real, sizes)}
        run8 = {}
        r = 0
        for i in reversed(real):
            r = r + 1 if size[id(i)] == 8 else 0
            run8[id(i)] = r
        out = []
        off = 0
        prev4 = []
        nprom = nnop = 0
        for i in self.ins:
            if i.kind == 'pseudo':
                out.append(i)
                continue
            n = size[id(i)]
            if n == 8 and off % 8 == 4 and prev4:
                fixed = False
                for cand in (prev4[-1], prev4[0]):
                    t = cand.text.split(';')[0].strip()
                    mn = t.split()[0]
                    if cand.kind in ('valu', 'trans', 'perm') and not re.search(r'_(e64|dpp|sdwa)$', mn) \
                            and not mn.startswith('v_accvgpr') and not mn.startswith('v_fmac'):
                        cand.text = re.sub(r'_e32$', '', mn) + '_e64' + t[len(mn):]
                        off += 4
                        fixed = True
                        nprom += 1
                        break
                if not fixed and run8[id(i)] >= minrun and not i.nopad:
                    out.append(Ins('s_nop 0', i.region))
                    off += 4
                    nnop += 1
            out.append(i)
            off += n
            if n == 8:
                prev4 = []
            else:
                prev4.append(i)
        self.ins = out
        self.align_stats = (nprom, nnop)

    def finish(self, align=True):
        self.pass_wait()
        self.pass_hazard()
        if align:
            self.pass_align()
        return self.text()


def vr(a, n=1, c='v'):
    return f'{c}{a}' if n == 1 else f'{c}[{a}:{a + n - 1}]'


def ar(a, n=1):
    return vr(a, n, 'a')


def sr(a, n=1):
    return vr(a, n, 's')
```

```python
import sys, os, struct, math
sys.path.insert(0, os.path.dirname(os.path.abspath(__file__)))
from emit import K, vr, ar, sr

NAME = 'adaLN_cond__linear_kernel_hedgehog__mixer_gmlp__prompt'
PROF = int(os.environ.get('PROF', '0'))
STOP = int(os.environ.get('STOP', '99'))

WS_MOD = 0x1000
FLC, FLD, FLG = 0x4000, 0x5000, 0x6000
FGB, FGC, FGD, FGF, FGG = 0x10000, 0x18000, 0x20000, 0x28000, 0x30000
WS_KVP = 0x100000
WS_O = 0x200000
WS_Y = 0x400000
WS_ST1 = 0x600000
WS_ST2 = 0x680000
WS_Z2 = 0x800000
WS_Z1 = 0xC00000
WS_U = 0x1000000
WS_DBG = 0x1400000
WS_SIZE = 0x2000000

XS_STRIDE = 912
L_WK = 120832
L_MODW = 149504
L_SILU = 116736
L_VEC = 116736
L_A = 0
L_B = 58368
L_WV = L_B
L_WQ = L_B + 28672
L_WPHI = 162048
L_VECP = 115712
L_UV = 119296
L_KVF = 120320
L_SLOT = 131072
PHI_STRIDE = 136
VF_OFF = 4352
LDS_BYTES = 163840

SX, SWQKV, SWPHI, SWO, SWIN, SWSP, SBSP, SWOUT, SC, SWMOD, SOUT, SWS = [4 + 4 * i for i in range(12)]
sW, sXCD, sI, sRB, sH, sTB, sCB, sTAG = range(52, 60)
sT0, sT1, sT2, sT3, sT4, sT5 = range(60, 66)
sCNT = 66
sSLOT = 67
sHI = 68
sEX = 70
sC0 = 72
sTS = 88
sPB = 90


def f2u(x):
    return struct.unpack('<I', struct.pack('<f', x))[0]


def srd(b):
    return f's[{b}:{b + 3}]'


k = K()
nstamp = [0]
stamp_names = []


def stamp(name):
    k._pseudo('@mark', name)
    if not PROF:
        return
    i = nstamp[0]
    nstamp[0] += 1
    stamp_names.append(name)
    k(f's_memtime s[{sTS}:{sTS + 1}]')
    k.wait_lgkm0()
    k(f'v_writelane_b32 v255, s{sTS}, {i}')


def weave(main, side, every, start=0):
    side = list(side)
    n = 0
    for idx, m in enumerate(main):
        (m() if callable(m) else k(m))
        if idx >= start:
            n += 1
            if n == every and side:
                s_ = side.pop(0)
                (s_() if callable(s_) else k(s_))
                n = 0
    for s_ in side:
        (s_() if callable(s_) else k(s_))


def run(items):
    for m in items:
        (m() if callable(m) else k(m))


def poll(vtmp, voff, soff):
    done = k.label('PD')
    k(f's_mov_b32 s{sCNT}, 0')
    k.wait_vm0()
    l2 = k.label('PG')
    k.raw(f'''{l2}:
        buffer_load_dword v{vtmp}, v{voff}, {srd(SWS)}, s{soff} offen sc1
        s_add_u32 s{sCNT}, s{sCNT}, 1
        s_waitcnt vmcnt(0)
        v_cmp_ne_u32 vcc, s{sTAG}, v{vtmp}
        s_cbranch_vccz {done}
        s_cmp_lt_u32 s{sCNT}, 0x40000
        s_cbranch_scc1 {l2}
        {done}:''')
    k.assume_vm0()


def lstore(texts, local=True):
    if isinstance(texts, str):
        texts = [texts]
    if not local:
        return k('\n'.join(t + (' sc1' if t.startswith('buffer_store') else '') for t in texts))
    slow, back = k.label('WT'), k.label('WB')
    k(f's_cmp_eq_u32 s{sLOC}, 0')
    k(f's_cbranch_scc1 {slow}')
    last = None
    for t in texts:
        i_ = k(t)
        if t.startswith('buffer_store'):
            last = i_
    k(f'{back}:')
    k.tail.append(f'{slow}:\ns_waitcnt vmcnt(0) lgkmcnt(0)\ns_nop 15\n'
                  + '\n'.join(t + (' sc1' if t.startswith('buffer_store') else '') for t in texts)
                  + f'\ns_nop 1\ns_branch {back}')
    return last


def set_flag(vtmp, soff, local):
    k(f's_cmp_eq_u32 s{sW}, 0')
    lab = k.begin_if('s_cbranch_scc0')
    k(f'v_mov_b32 v{vtmp}, s{sTAG}')
    k('s_mov_b64 exec, 1')
    lstore(f'buffer_store_dword v{vtmp}, off, {srd(SWS)}, s{soff}', local)
    k('s_mov_b64 exec, -1')
    k.end_if(lab)


def publish(last_store, vtmp, soff, local):
    k.wait_vm(last_store)
    k.barrier()
    set_flag(vtmp, soff, local)


def finish_early(n):
    if STOP == n:
        k('s_branch L_END')


def unpack(dlo, dhi, src):
    k(f'v_lshlrev_b32 v{dlo}, 16, v{src}')
    k(f'v_and_b32 v{dhi}, 0xffff0000, v{src}')


k('s_cmp_ge_u32 s2, 256')
k('s_cbranch_scc1 L_EXIT')
for (b, off) in ((SC, 72), (SWMOD, 80), (SX, 0), (SWQKV, 8), (SWS, 104), (SWPHI, 16), (SWO, 24), (SWIN, 40),
                 (SWSP, 48), (SBSP, 56), (SWOUT, 64), (SOUT, 88)):
    k(f's_load_dwordx2 s[{b}:{b + 1}], s[0:1], {off}')
k('v_lshrrev_b32 v1, 6, v0')
k('v_and_b32 v0, 63, v0')
k(f'v_readfirstlane_b32 s{sW}, v1')
for (b, size) in ((SC, 896), (SWMOD, 448 * 5376), (SX, 2048 * 896), (SWQKV, 448 * 2688), (SWS, WS_SIZE),
                  (SWPHI, 16 * 1568), (SWO, 448 * 896), (SWIN, 448 * 3584), (SWSP, 2048 * 4096), (SBSP, 4096),
                  (SWOUT, 896 * 896), (SOUT, 2048 * 896)):
    k(f's_mov_b32 s{b + 2}, {size}')
    k(f's_mov_b32 s{b + 3}, 0x20000')
k(f's_and_b32 s{sXCD}, s2, 7')
k(f's_lshr_b32 s{sI}, s2, 3')
k(f's_lshr_b32 s{sT0}, s{sI}, 4')
k(f's_lshl_b32 s{sRB}, s{sXCD}, 1')
k(f's_add_u32 s{sRB}, s{sRB}, s{sT0}')
k(f's_and_b32 s{sH}, s{sI}, 15')
k(f's_lshr_b32 s{sT0}, s{sI}, 3')
k(f's_lshl_b32 s{sTB}, s{sXCD}, 2')
k(f's_add_u32 s{sTB}, s{sTB}, s{sT0}')
k(f's_and_b32 s{sCB}, s{sI}, 7')
k(f's_lshl_b32 s{sSLOT}, s{sW}, 13')
k(f's_add_u32 s{sSLOT}, s{sSLOT}, {L_SLOT}')
k(f's_mov_b32 s{sHI}, 0')
k(f's_mov_b32 s{sHI + 1}, -1')
if PROF:
    k('v_mov_b32 v255, 0')
k.wait_lgkm0()
k(f's_load_dword s{sTAG}, s[{SWS}:{SWS + 1}], 0')
stamp('entry')

k(f's_cmp_eq_u32 s{sW}, 0')
k('s_cbranch_scc1 L_W0')
k.raw(f'''
    s_getpc_b64 s[{sT2}:{sT3}]
L_PC:
    s_mul_i32 s{sT0}, s{sI}, 3
    s_add_u32 s{sT0}, s{sT0}, s{sW}
    s_sub_u32 s{sT0}, s{sT0}, 1
    s_lshl_b32 s{sT0}, s{sT0}, 10
    v_lshl_add_u32 v2, v0, 4, s{sT0}
    v_min_u32 v2, L_CODE_END-L_PC-16, v2
    global_load_dwordx4 v[4:7], v2, s[{sT2}:{sT3}]
    v_lshlrev_b32 v1, 4, v0
    s_mul_i32 s{sT4}, s{sRB}, {128 * 896}
    s_sub_u32 s{sT0}, s{sW}, 1
    s_lshl_b32 s{sT5}, s{sH}, 3
    s_mov_b32 exec_lo, -1
    s_mov_b32 exec_hi, 0xffffff
L_XROW:
    s_add_u32 s{sT1}, s{sT0}, s{sT5}
    s_and_b32 s{sT1}, s{sT1}, 127
    s_mul_i32 m0, s{sT1}, {XS_STRIDE}
    s_mul_i32 s{sT1}, s{sT1}, 896
    s_add_u32 s{sT1}, s{sT1}, s{sT4}
    s_add_u32 s{sT0}, s{sT0}, 3
    buffer_load_dwordx4 v1, {srd(SX)}, s{sT1} offen lds
    s_cmp_lt_u32 s{sT0}, 128
    s_cbranch_scc1 L_XROW
    s_mov_b64 exec, -1
    v_lshrrev_b32 v2, 2, v0
    v_mul_u32_u24 v2, 2688, v2
    v_and_b32 v3, 3, v0
    v_lshl_add_u32 v2, v3, 4, v2
    s_mul_i32 s{sT4}, s{sH}, 56
    s_add_u32 s{sT4}, s{sT4}, 896
    s_sub_u32 s{sT0}, s{sW}, 1
L_WKROW:
    s_lshl_b32 s{sT1}, s{sT0}, 10
    s_add_u32 m0, s{sT1}, {L_WK}
    s_mul_i32 s{sT1}, s{sT0}, {16 * 2688}
    s_add_u32 s{sT1}, s{sT1}, s{sT4}
    s_add_u32 s{sT0}, s{sT0}, 3
    buffer_load_dwordx4 v2, {srd(SWQKV)}, s{sT1} offen lds
    s_cmp_lt_u32 s{sT0}, 28
    s_cbranch_scc1 L_WKROW
    s_waitcnt vmcnt(9) lgkmcnt(0)
    s_add_u32 s{sTAG}, s{sTAG}, 1
    s_branch L_B0
''')
k('L_W0:')
k(f's_cmp_lt_u32 s{sI}, 21')
lab_mod = k.begin_if('s_cbranch_scc0')
k(f's_mul_i32 s{sT0}, s{sXCD}, 21')
k(f's_add_u32 s{sT0}, s{sT0}, s{sI}')
k('v_lshlrev_b32 v1, 4, v0')
k(f'buffer_load_dwordx4 v[8:11], v1, {srd(SC)}, 0 offen')
k('v_lshrrev_b32 v2, 1, v0')
k('v_mul_u32_u24 v2, 5376, v2')
k('v_and_b32 v3, 1, v0')
k('v_lshl_add_u32 v2, v3, 4, v2')
k(f's_lshl_b32 s{sT1}, s{sT0}, 5')
modtok = []
for 	m in range(14):
    k(f's_mov_b32 m0, {L_MODW + m * 1024}')
    modtok.append(k(f'buffer_load_dwordx4 v2, {srd(SWMOD)}, s{sT1} offen lds'))
    if m < 13:
        k(f's_add_u32 s{sT1}, s{sT1}, {32 * 5376}')
for q in range(4):
    unpack(12 + 2 * q, 13 + 2 * q, 8 + q)
for q in range(8):
    k(f'v_mul_f32 v{20 + q}, {hex(f2u(-math.log2(math.e)))}, v{12 + q}')
for q in range(8):
    k(f'v_exp_f32 v{20 + q}, v{20 + q}')
for q in range(8):
    k(f'v_add_f32 v{20 + q}, 1.0, v{20 + q}')
for q in range(8):
    k(f'v_rcp_f32 v{20 + q}, v{20 + q}')
for q in range(8):
    k(f'v_mul_f32 v{20 + q}, v{12 + q}, v{20 + q}')
for q in range(4):
    k(f'v_cvt_pk_bf16_f32 v{8 + q}, v{20 + 2 * q}, v{21 + 2 * q}')
k(f'v_add_u32 v4, {L_SILU}, v1')
k('ds_write_b128 v4, v[8:11]')
k('v_lshrrev_b32 v3, 4, v0')
k(f'v_lshlrev_b32 v4, 4, v3')
k(f'v_add_u32 v4, {L_SILU}, v4')
for m in range(14):
    k(f'ds_read_b128 v[{32 + 4 * m}:{35 + 4 * m}], v4 offset:{64 * m}')
k('v_bfe_u32 v5, v0, 2, 2')
k('v_lshl_add_u32 v5, v3, 3, v5')
k('v_lshlrev_b32 v5, 5, v5')
k('v_and_b32 v6, 3, v0')
k('v_lshl_add_u32 v5, v6, 3, v5')
k(f'v_add_u32 v5, {L_MODW}, v5')
for m in range(14):
    k.wait_vm(modtok[m])
    k(f'ds_read_b64_tr_b16 v[{96 + 4 * m}:{97 + 4 * m}], v5 offset:{1024 * m}')
    k(f'ds_read_b64_tr_b16 v[{98 + 4 * m}:{99 + 4 * m}], v5 offset:{1024 * m + 128}')
k.wait_lgkm0()
for m in range(14):
    k(f'v_mfma_f32_16x16x32_bf16 v[12:15], v[{96 + 4 * m}:{99 + 4 * m}], v[{32 + 4 * m}:{35 + 4 * m}], '
      + ('0' if m == 0 else 'v[12:15]'))
k(f's_sub_u32 s{sT1}, s{sT0}, 28')
k(f's_cmp_lt_u32 s{sT1}, 28')
k(f's_cselect_b32 s{sT2}, 1.0, 0')
k(f's_sub_u32 s{sT1}, s{sT0}, 112')
k(f's_cmp_lt_u32 s{sT1}, 28')
k(f's_cselect_b32 s{sT2}, 1.0, s{sT2}')
k(f's_lshl_b32 s{sT1}, s{sT0}, 6')
k(f's_add_u32 s{sT1}, s{sT1}, {WS_MOD}')
k(f's_add_u32 s{sT3}, s{sTAG}, 1')
k('v_lshlrev_b32 v4, 4, v3')
k(f'v_mov_b32 v10, s{sT3}')
k(f'v_mov_b32 v11, s{sT3}')
k('v_cvt_pk_bf16_f32 v8, v12, v13')
k('v_cvt_pk_bf16_f32 v9, v14, v15')
unpack(12, 13, 8)
unpack(14, 15, 9)
for q in range(4):
    k(f'v_add_f32 v{12 + q}, s{sT2}, v{12 + q}')
k('v_cvt_pk_bf16_f32 v8, v12, v13')
k('v_cvt_pk_bf16_f32 v9, v14, v15')
k('s_mov_b32 exec_lo, 0x00010001')
k('s_mov_b32 exec_hi, 0x00010001')
k(f'buffer_store_dwordx4 v[8:11], v4, {srd(SWS)}, s{sT1} offen sc1')
k('s_mov_b64 exec, -1')
k.end_if(lab_mod)
k.wait_lgkm0()
k(f's_add_u32 s{sTAG}, s{sTAG}, 1')
stamp('mod_pub')
k('L_B0:')
k('s_barrier')
stamp('x_landed')

N0 = 8
VB = 216


def nreg(s):
    return N0 + 8 * s if s < 26 else VB + 8 * (s - 26)


k('v_and_b32 v1, 31, v0')
k(f'v_mul_u32_u24 v1, {XS_STRIDE}, v1')
k('v_lshrrev_b32 v2, 5, v0')
k('v_lshl_add_u32 v1, v2, 4, v1')
k(f's_mul_i32 s{sT0}, s{sW}, {32 * XS_STRIDE}')
k(f'v_add_u32 v1, s{sT0}, v1')
for s in range(28):
    k(f'ds_read_b128 v[{nreg(s) + 4}:{nreg(s) + 7}], v1 offset:{32 * s}')
k('v_lshrrev_b32 v2, 2, v0')
k('v_mul_u32_u24 v2, 2688, v2')
k('v_and_b32 v3, 3, v0')
k('v_lshl_add_u32 v2, v3, 4, v2')
k('v_lshrrev_b32 v3, 3, v0')
k('v_and_b32 v4, 7, v0')
k('v_and_b32 v5, 6, v3')
k('v_xor_b32 v4, v4, v5')
k('v_mul_u32_u24 v3, 896, v3')
k('v_lshl_add_u32 v3, v4, 4, v3')
k('v_lshrrev_b32 v4, 5, v0')
k('v_bfe_u32 v5, v0, 2, 2')
k('v_lshl_add_u32 v4, v4, 3, v5')
k('v_lshlrev_b32 v4, 6, v4')
k('v_bfe_u32 v5, v0, 4, 1')
k('v_lshl_add_u32 v4, v5, 5, v4')
k('v_and_b32 v5, 3, v0')
k('v_lshl_add_u32 v4, v5, 3, v4')
k(f'v_add_u32 v5, {L_WK}, v4')
k(f'v_add_u32 v4, {L_WV}, v4')
k.barrier()
stamp('x_read')

tok = {}


def dma_w(part, lbase, q):
    def f():
        if q == 0:
            k(f's_mul_i32 s{sT4}, s{sW}, {7 * 16 * 2688}')
            k(f's_mul_i32 s{sT5}, s{sH}, 56')
            k(f's_add_u32 s{sT4}, s{sT4}, s{sT5}')
            k(f's_add_u32 s{sT4}, s{sT4}, {part * 896}')
            k(f's_mul_i32 s{sT5}, s{sW}, {7 * 1024}')
            k(f's_add_u32 m0, s{sT5}, {lbase}')
        else:
            k(f's_add_u32 s{sT4}, s{sT4}, {16 * 2688}')
            k('s_add_u32 m0, m0, 1024')
        tok[('w', part)] = k(f'buffer_load_dwordx4 v2, {srd(SWQKV)}, s{sT4} offen lds')
    return f


def dma_wphi():
    k(f's_cmp_eq_u32 s{sW}, 0')
    lab = k.begin_if('s_cbranch_scc0')
    k(f's_mul_i32 s{sT4}, s{sH}, 1568')
    k(f's_mov_b32 m0, {L_WPHI}')
    k('v_lshlrev_b32 v6, 4, v0')
    k(f'buffer_load_dwordx4 v6, {srd(SWPHI)}, s{sT4} offen lds')
    k('s_mov_b32 exec_hi, 0xffff')
    k(f'buffer_load_dwordx4 v6, {srd(SWPHI)}, s{sT4} offen offset:1024 lds')
    k('s_mov_b32 exec_hi, -1')
    k.end_if(lab)


def dma_wo(q):
    def f():
        k(f's_mul_i32 s{sT4}, s{sW}, 15')
        k(f's_add_u32 s{sT4}, s{sT4}, {q}')
        k(f's_min_u32 s{sT4}, s{sT4}, 56')
        k(f's_lshl_b32 m0, s{sT4}, 10')
        k(f's_mul_i32 s{sT4}, s{sT4}, {8 * 896}')
        k(f's_lshl_b32 s{sT5}, s{sCB}, 7')
        k(f's_add_u32 s{sT4}, s{sT4}, s{sT5}')
        tok['wo'] = k(f'buffer_load_dwordx4 v3, {srd(SWO)}, s{sT4} offen lds')
    return f


SUM, SQ = 248, 250
ln_a = []
for s in range(28):
    n = nreg(s)
    ln_a += [f'v_lshlrev_b32 v{n}, 16, v{n + 4}', f'v_and_b32 v{n + 1}, 0xffff0000, v{n + 4}',
             f'v_lshlrev_b32 v{n + 2}, 16, v{n + 5}', f'v_and_b32 v{n + 3}, 0xffff0000, v{n + 5}',
             f'v_lshlrev_b32 v{n + 4}, 16, v{n + 6}', f'v_and_b32 v{n + 5}, 0xffff0000, v{n + 6}',
             f'v_lshlrev_b32 v{n + 6}, 16, v{n + 7}', f'v_and_b32 v{n + 7}, 0xffff0000, v{n + 7}']
    for q in range(4):
        p = vr(n + 2 * q, 2)
        if s == 0 and q == 0:
            ln_a += [f'v_pk_add_f32 v[{SUM}:{SUM + 1}], {p}, 0 op_sel_hi:[1,0]',
                     f'v_pk_mul_f32 v[{SQ}:{SQ + 1}], {p}, {p}']
        else:
            ln_a += [f'v_pk_add_f32 v[{SUM}:{SUM + 1}], v[{SUM}:{SUM + 1}], {p}',
                     f'v_pk_fma_f32 v[{SQ}:{SQ + 1}], {p}, {p}, v[{SQ}:{SQ + 1}]']


def wread(s, which, dst):
    c, b = dst
    addr, off = ('v5', 0) if which == 0 else ('v4', 0 if which == 1 else 28672)
    return [f'ds_read_b64_tr_b16 {vr(b, 2, c)}, {addr} offset:{off + 1024 * s}',
            f'ds_read_b64_tr_b16 {vr(b + 2, 2, c)}, {addr} offset:{off + 1024 * s + 256}']


def grouped(items, n):
    return ['\n'.join(items[i:i + n]) for i in range(0, len(items), n)]


third = 160
side1 = [dma_w(2, L_WV, q) for q in range(7)] + [dma_wphi] + [dma_w(0, L_WQ, q) for q in range(7)]
weave(ln_a[:third], side1, 10)
k.raw('s_waitcnt vmcnt(14)')
k('s_barrier')
kreads = []
for s in range(26):
    kreads += wread(s, 0, ('a', 32 + 8 * s))
side2 = []
for gi, gtxt in enumerate(grouped(kreads, 4)):
    side2.append(gtxt)
    side2.append(dma_wo(gi))
side2 += [dma_wo(13), dma_wo(14)]
weave(ln_a[third:], side2, 10)
k(f'v_add_f32 v{SUM}, v{SUM}, v{SUM + 1}')
k(f'v_add_f32 v{SQ}, v{SQ}, v{SQ + 1}')
k(f'v_permlane32_swap_b32 v{SUM}, v{SQ}')
k(f'v_add_f32 v{SUM}, v{SUM}, v{SQ}')
k(f'v_mov_b32 v{SQ}, v{SUM}')
k(f'v_permlane32_swap_b32 v{SUM}, v{SQ}')
k(f'v_mul_f32 v{SUM}, {hex(f2u(1.0 / 448))}, v{SUM}')
k(f'v_mul_f32 v{SQ}, {hex(f2u(1.0 / 448))}, v{SQ}')
k(f'v_fma_f32 v{SQ}, -v{SUM}, v{SUM}, v{SQ}')
k(f'v_max_f32 v{SQ}, 0, v{SQ}')
k(f'v_add_f32 v{SQ}, {hex(f2u(1e-5))}, v{SQ}')
k(f'v_rsq_f32 v{SQ}, v{SQ}')
k.wait_vm(tok[('w', 2)])
k('s_barrier')
k(f'v_mul_f32_e64 v{SUM}, -v{SUM}, v{SQ}')
ln_b = []
for s in [26, 27] + list(range(26)):
    n = nreg(s)
    for q in range(4):
        p = vr(n + 2 * q, 2)
        ln_b.append(f'v_pk_fma_f32 {p}, {p}, v[{SQ}:{SQ + 1}], v[{SUM}:{SUM + 1}] op_sel_hi:[1,0,0]')
    if s == 27:
        for q in range(16):
            ln_b.append(f'v_accvgpr_write_b32 a{240 + q}, v{VB + q}')
vreads = []
for s in range(26):
    vreads += wread(s, 1, ('a', 36 + 8 * s))
weave(ln_b, grouped(vreads, 4), 9)
stamp('ln1_done')

k(f's_lshl_b32 s{sT0}, s{sW}, 6')
k(f'v_add_u32 v1, s{sT0}, v0')
k('v_min_u32 v1, 223, v1')
k('v_lshlrev_b32 v2, 4, v1')
k(f's_mov_b32 s{sT1}, {WS_MOD}')
k('v_subrev_u32 v6, 112, v1')
k('v_cmp_gt_u32 vcc, 112, v1')
k('v_cndmask_b32 v6, v6, v1, vcc')
k('v_lshrrev_b32 v7, 1, v6')
k('v_lshlrev_b32 v7, 6, v7')
k('v_and_b32 v6, 1, v6')
k('v_lshl_add_u32 v7, v6, 4, v7')
k('v_cndmask_b32 v6, 0, 32, vcc')
k(f'v_mov_b32 v1, {L_VEC}')
k('v_add3_u32 v7, v7, v6, v1')
k(f's_mov_b32 s{sCNT}, 0')
k.wait_vm0()
k.raw(f'''L_PA:
    buffer_load_dwordx4 v[{VB}:{VB + 3}], v2, {srd(SWS)}, s{sT1} offen sc1
    s_add_u32 s{sCNT}, s{sCNT}, 1
    s_waitcnt vmcnt(0)
    v_cmp_ne_u32 vcc, s{sTAG}, v{VB + 2}
    s_cbranch_vccz L_PAD
    s_cmp_lt_u32 s{sCNT}, 0x40000
    s_cbranch_scc1 L_PA
L_PAD:''')
k.assume_vm0()
unpack(VB + 4, VB + 5, VB)
unpack(VB + 6, VB + 7, VB + 1)
k(f'ds_write_b128 v7, v[{VB + 4}:{VB + 7}]')
k('v_lshrrev_b32 v6, 5, v0')
k('v_lshl_add_u32 v6, v6, 6, v1')
k.barrier()
stamp('mod_got')


def hreg(s):
    return N0 + 8 * s if s < 26 else (12 if s == 26 else 28)


def nel(s, j):
    if s < 26:
        return N0 + 8 * s + j
    return (12 if s == 26 else 28) + (j if j < 4 else j + 4)


def vbuf(hs):
    return VB + 8 * (hs & 3)


def vread(hs):
    s, h_ = hs >> 1, hs & 1
    b = vbuf(hs)
    return [f'ds_read_b128 v[{b}:{b + 3}], v6 offset:{128 * s + 16 * h_}',
            f'ds_read_b128 v[{b + 4}:{b + 7}], v6 offset:{128 * s + 32 + 16 * h_}']


def wfrag(s, which):
    ss = s if s < 26 else s - 26
    return 32 + 8 * ss + 4 * which


WPH = (44, 52)
for hs in range(4):
    run(vread(hs))
for s in range(29):
    if s < 28:
        for h_ in range(2):
            b = vbuf(2 * s + h_)
            for j in range(4):
                e = nel(s, 4 * h_ + j)
                k(f'v_fma_f32 v{e}, v{e}, v{b + j}, v{b + 4 + j}')
            if s > 0:
                p = s - 1
                if h_ == 0:
                    k(f'v_mfma_f32_32x32x16_bf16 a[0:15], {ar(wfrag(p, 0), 4)}, {vr(hreg(p), 4)}, '
                      + ('0' if p == 0 else 'a[0:15]'))
        rd = []
        for hs in (2 * s + 4, 2 * s + 5):
            if hs < 56:
                rd += vread(hs)
        if s == 4:
            rd += wread(26, 0, ('a', wfrag(26, 0))) + wread(26, 1, ('a', wfrag(26, 1)))
        if s == 5:
            rd += wread(27, 0, ('a', wfrag(27, 0))) + wread(27, 1, ('a', wfrag(27, 1)))
        if s == 8:
            k('v_lshrrev_b32 v1, 5, v0')
            k('v_bfe_u32 v2, v0, 2, 2')
            k('v_lshl_add_u32 v1, v1, 2, v2')
            k('v_mul_u32_u24 v1, 56, v1')
            k('v_bfe_u32 v2, v0, 4, 1')
            k('v_lshl_add_u32 v1, v2, 5, v1')
            k('v_and_b32 v2, 3, v0')
            k('v_lshl_add_u32 v1, v2, 3, v1')
            k(f'v_add_u32 v1, {L_WPHI}, v1')
            for t in range(2):
                for rho in range(2):
                    rd.append(f'ds_read_b64_tr_b16 {vr(WPH[t] + 2 * rho, 2)}, v1 offset:{(16 * t + 8 * rho) * 56}')
        run(rd)
        if s > 0:
            p = s - 1
            k(f'v_mfma_f32_32x32x16_bf16 a[16:31], {vr(hreg(p), 4)}, {ar(wfrag(p, 1), 4)}, '
              + ('0' if p == 0 else 'a[16:31]'))
        for q in range(4):
            k(f'v_cvt_pk_bf16_f32 v{hreg(s) + q}, v{nel(s, 2 * q)}, v{nel(s, 2 * q + 1)}')
        if s in (10, 11, 12, 13):
            for q in range(4):
                i_ = 4 * (s - 10) + q
                k(f'v_accvgpr_read_b32 v{nel(26 + (i_ >> 3), i_ & 7)}, a{240 + i_}')
    else:
        p = 27
        k(f'v_mfma_f32_32x32x16_bf16 a[0:15], {ar(wfrag(p, 0), 4)}, {vr(hreg(p), 4)}, a[0:15]')
        k(f'v_mfma_f32_32x32x16_bf16 a[16:31], {vr(hreg(p), 4)}, {ar(wfrag(p, 1), 4)}, a[16:31]')
k(f'v_cndmask_b32 v{WPH[1] + 2}, v{WPH[1] + 2}, 0, s[{sHI}:{sHI + 1}]')
k(f'v_cndmask_b32 v{WPH[1] + 3}, v{WPH[1] + 3}, 0, s[{sHI}:{sHI + 1}]')
stamp('kv_gemm')

LG = 216
EX = 232


def up(s):
    return N0 + 8 * s + 4


LOG2E = math.log2(math.e)


def feature_map(src_pairs, out4):
    k(f'v_mfma_f32_32x32x16_bf16 {vr(LG, 16)}, {vr(WPH[0], 4)}, {vr(src_pairs[0], 4)}, 0')
    k(f'v_mfma_f32_32x32x16_bf16 {vr(LG, 16)}, {vr(WPH[1], 4)}, {vr(src_pairs[1], 4)}, {vr(LG, 16)}')


def softmax2(out4):
    M, Nn, M2, N2 = 248, 250, 249, 251
    L = LG
    k(f'v_max3_f32 v{M}, v{L}, v{L + 1}, v{L + 2}')
    k(f'v_min3_f32 v{Nn}, v{L}, v{L + 1}, v{L + 2}')
    for q in range(3, 11, 2):
        k(f'v_max3_f32 v{M}, v{M}, v{L + q}, v{L + q + 1}')
        k(f'v_min3_f32 v{Nn}, v{Nn}, v{L + q}, v{L + q + 1}')
    k(f'v_max_f32 v{M}, v{M}, v{L + 11}')
    k(f'v_min_f32 v{Nn}, v{Nn}, v{L + 11}')
    k(f'v_max3_f32 v{M2}, v{M}, v{L + 12}, v{L + 13}')
    k(f'v_min3_f32 v{N2}, v{Nn}, v{L + 12}, v{L + 13}')
    k(f'v_max3_f32 v{M2}, v{M2}, v{L + 14}, v{L + 15}')
    k(f'v_min3_f32 v{N2}, v{N2}, v{L + 14}, v{L + 15}')
    k(f'v_cndmask_b32 v{M}, v{M2}, v{M}, s[{sHI}:{sHI + 1}]')
    k(f'v_cndmask_b32_e64 v{Nn}, -v{N2}, -v{Nn}, s[{sHI}:{sHI + 1}]')
    k(f's_mov_b32 s{sC0}, {hex(f2u(LOG2E))}')
    k(f's_mov_b32 s{sC0 + 1}, {hex(f2u(LOG2E))}')
    k(f'v_permlane32_swap_b32 v{M}, v{Nn}')
    k(f'v_max_f32 v{M}, v{M}, v{Nn}')
    k(f'v_mul_f32 v{M}, {hex(f2u(-LOG2E))}, v{M}')
    k(f'v_mov_b32 v{Nn}, v{M}')
    k(f'v_mov_b32 v252, 0xff800000')
    k(f'v_permlane32_swap_b32 v{M}, v{Nn}')
    k(f'v_cndmask_b32 v{M2}, v{M}, v252, s[{sHI}:{sHI + 1}]')
    k(f'v_cndmask_b32 v{N2}, v{Nn}, v252, s[{sHI}:{sHI + 1}]')
    for q in range(8):
        sel = 'op_sel_hi:[1,1,0]' if q < 6 else 'op_sel:[0,0,1] op_sel_hi:[1,1,1]'
        k(f'v_pk_fma_f32 {vr(EX + 2 * q, 2)}, {vr(L + 2 * q, 2)}, s[{sC0}:{sC0 + 1}], v[{M}:{M + 1}] {sel}')
        k(f'v_pk_fma_f32 {vr(L + 2 * q, 2)}, {vr(L + 2 * q, 2)}, s[{sC0}:{sC0 + 1}], v[{Nn}:{Nn + 1}] {sel} '
          'neg_lo:[1,0,0] neg_hi:[1,0,0]')
    for q in range(16):
        k(f'v_exp_f32 v{EX + q}, v{EX + q}')
    for q in range(16):
        k(f'v_exp_f32 v{L + q}, v{L + q}')
    k(f'v_pk_add_f32 v[{M}:{M + 1}], {vr(EX, 2)}, {vr(EX + 2, 2)}')
    k(f'v_pk_add_f32 v[{Nn}:{Nn + 1}], {vr(L, 2)}, {vr(L + 2, 2)}')
    for q in range(2, 8):
        k(f'v_pk_add_f32 v[{M}:{M + 1}], v[{M}:{M + 1}], {vr(EX + 2 * q, 2)}')
        k(f'v_pk_add_f32 v[{Nn}:{Nn + 1}], v[{Nn}:{Nn + 1}], {vr(L + 2 * q, 2)}')
    k(f'v_add_f32 v{M}, v{M}, v{M + 1}')
    k(f'v_add_f32 v{Nn}, v{Nn}, v{Nn + 1}')
    k(f'v_permlane32_swap_b32 v{M}, v{Nn}')
    k(f'v_add_f32 v{M}, v{M}, v{Nn}')
    k(f'v_rcp_f32 v{M}, v{M}')
    k(f'v_mov_b32 v{Nn}, v{M}')
    k(f'v_permlane32_swap_b32 v{M}, v{Nn}')
    for q in range(8):
        k(f'v_pk_mul_f32 {vr(EX + 2 * q, 2)}, {vr(EX + 2 * q, 2)}, v[{M}:{M + 1}] op_sel_hi:[1,0]')
        k(f'v_pk_mul_f32 {vr(L + 2 * q, 2)}, {vr(L + 2 * q, 2)}, v[{Nn}:{Nn + 1}] op_sel_hi:[1,0]')
    for q in range(8):
        k(f'v_cvt_pk_bf16_f32 v{out4[q >> 2] + (q & 3)}, v{EX + 2 * q}, v{EX + 2 * q + 1}')
    for q in range(8):
        k(f'v_cvt_pk_bf16_f32 v{out4[2 + (q >> 2)] + (q & 3)}, v{L + 2 * q}, v{L + 2 * q + 1}')


KP = (up(6), up(7))
VP = (up(8), up(9))
PK = (up(10), up(11), up(12), up(13))
for q in range(16):
    k(f'v_accvgpr_read_b32 v{EX + q}, a{q}')
for q in range(8):
    k(f'v_cvt_pk_bf16_f32 v{KP[q >> 2] + (q & 3)}, v{EX + 2 * q}, v{EX + 2 * q + 1}')
feature_map(KP, PK)
for q in range(16):
    k(f'v_accvgpr_read_b32 v{EX + q}, a{16 + q}')
for q in range(8):
    k(f'v_cvt_pk_bf16_f32 v{VP[q >> 2] + (q & 3)}, v{EX + 2 * q}, v{EX + 2 * q + 1}')
k('s_mov_b32 exec_lo, 0x10000000')
k('s_mov_b32 exec_hi, 0x10000000')
for q in range(8):
    k(f'v_mov_b32 v{VP[q >> 2] + (q & 3)}, 0x3f803f80')
k('s_mov_b64 exec, -1')
softmax2(PK)
k('v_and_b32 v1, 31, v0')
k(f'v_mul_u32_u24 v1, {PHI_STRIDE}, v1')
k('v_lshrrev_b32 v2, 5, v0')
k('v_lshl_add_u32 v1, v2, 3, v1')
k(f'v_add_u32 v1, s{sSLOT}, v1')
k('v_bfe_u32 v3, v0, 4, 1')
k('v_lshlrev_b32 v3, 10, v3')
k('v_lshl_add_u32 v3, v2, 8, v3')
k('v_and_b32 v7, 15, v0')
k('v_lshl_add_u32 v3, v7, 4, v3')
k(f'v_add_u32 v3, s{sSLOT}, v3')
k.barrier()
for sg in range(2):
    for q in range(4):
        r = PK[2 * sg + (q >> 1)] + 2 * (q & 1)
        k(f'ds_write_b64 v1, {vr(r, 2)} offset:{64 * sg + 16 * q}')
for t in range(2):
    k(f'ds_write_b128 v3, {vr(VP[t], 4)} offset:{VF_OFF + 512 * t}')
k('v_bfe_u32 v1, v0, 4, 1')
k('v_lshlrev_b32 v1, 2, v1')
k('v_lshl_add_u32 v1, v2, 4, v1')
k('v_bfe_u32 v7, v0, 2, 2')
k('v_add_u32 v1, v1, v7')
k(f'v_mul_u32_u24 v1, {PHI_STRIDE}, v1')
k('v_and_b32 v7, 3, v0')
k('v_lshl_add_u32 v1, v7, 3, v1')
k(f's_lshl_b32 s{sT0}, s{sW}, 5')
k(f's_add_u32 s{sT0}, s{sT0}, {L_SLOT}')
k(f'v_add_u32 v1, s{sT0}, v1')
k('v_lshlrev_b32 v7, 4, v0')
k(f'v_add_u32 v3, {L_SLOT}, v7')
k(f's_lshl_b32 s{sT0}, s{sH}, 4')
k(f's_add_u32 s{sT0}, s{sT0}, s{sRB}')
k(f's_lshl_b32 s{sT1}, s{sT0}, 12')
k(f's_lshl_b32 s{sT2}, s{sW}, 10')
k(f's_add_u32 s{sT1}, s{sT1}, s{sT2}')
k(f's_add_u32 s{sT1}, s{sT1}, {WS_KVP}')
k(f's_lshl_b32 s{sT0}, s{sT0}, 7')
k(f's_add_u32 s{sT0}, s{sT0}, {FGB}')
k.barrier()
AF = [up(14), up(15), up(16), up(17)]
for u in range(4):
    for rho in range(2):
        k(f'ds_read_b64_tr_b16 {vr(AF[u] + 2 * rho, 2)}, v1 offset:{8192 * u + 8 * rho * PHI_STRIDE}')
    for e in range(2):
        k(f'ds_read_b128 {vr(LG + 8 * u + 4 * e, 4)}, v3 offset:{8192 * u + VF_OFF + 1024 * e}')
KD = (up(18), up(19))
for u in range(4):
    for e in range(2):
        k(f'v_mfma_f32_16x16x32_bf16 {vr(KD[e], 4)}, {vr(AF[u], 4)}, {vr(LG + 8 * u + 4 * e, 4)}, '
          + ('0' if u == 0 else vr(KD[e], 4)))
KO = up(20)
for e in range(2):
    for q in range(2):
        k(f'v_cvt_pk_bf16_f32 v{KO + 2 * e + q}, v{KD[e] + 2 * q}, v{KD[e] + 2 * q + 1}')
st = k(f'buffer_store_dwordx4 {vr(KO, 4)}, v7, {srd(SWS)}, s{sT1} offen sc1')
publish(st, 1, None, sT0)
stamp('kv_pub')

QB = [up(14), up(15), up(16), up(17)]
for s in range(3):
    run(wread(s, 2, ('v', QB[s & 3])))
for s in range(28):
    if s + 3 < 28:
        run(wread(s + 3, 2, ('v', QB[(s + 3) & 3])))
    k(f'v_mfma_f32_32x32x16_bf16 {vr(EX, 16)}, {vr(QB[s & 3], 4)}, {vr(hreg(s), 4)}, '
      + ('0' if s == 0 else vr(EX, 16)))
for q in range(8):
    k(f'v_cvt_pk_bf16_f32 v{KP[q >> 2] + (q & 3)}, v{EX + 2 * q}, v{EX + 2 * q + 1}')
feature_map(KP, None)
k.barrier()
k('v_lshrrev_b32 v3, 3, v0')
k('v_and_b32 v4, 7, v0')
k('v_and_b32 v5, 6, v3')
k('v_xor_b32 v4, v4, v5')
k('v_mul_u32_u24 v3, 3584, v3')
k('v_lshl_add_u32 v3, v4, 4, v3')
k(f's_lshr_b32 s{sT0}, s{sH}, 1')
k(f's_mul_i32 s{sT0}, s{sT0}, {7 * 32}')
k(f's_and_b32 s{sT1}, s{sH}, 1')
k(f's_lshl_b32 s{sT2}, s{sT1}, 7')
k(f's_add_u32 s{sT2}, s{sT2}, s{sT0}')
k(f's_add_u32 s{sT2}, s{sT2}, 1792')
k(f's_cmp_eq_u32 s{sT1}, 0')
k(f's_cselect_b32 s{sT3}, s{sT2}, s{sT0}')
k(f'v_mov_b32 v5, s{sT2}')
k(f'v_mov_b32 v6, s{sT3}')
k('v_cmp_gt_u32 vcc, 6, v4')
k('v_cndmask_b32 v5, v6, v5, vcc')
k('v_add_u32 v3, v3, v5')


def dma_win1(q):
    def f():
        if q == 0:
            k(f's_mul_i32 s{sT4}, s{sW}, {14 * 8 * 3584}')
            k(f's_mul_i32 s{sT5}, s{sW}, {14 * 1024}')
            k(f's_add_u32 m0, s{sT5}, {L_B}')
        else:
            k(f's_add_u32 s{sT4}, s{sT4}, {8 * 3584}')
            k('s_add_u32 m0, m0, 1024')
        tok['win1'] = k(f'buffer_load_dwordx4 v3, {srd(SWIN)}, s{sT4} offen lds')
    return f


run([dma_win1(q) for q in range(14)])
PQ = (up(10), up(11), up(12), up(13))
softmax2(PQ)
stamp('q_done')

k(f's_lshl_b32 s{sT0}, s{sW}, 6')
k(f'v_add_u32 v1, s{sT0}, v0')
k('v_min_u32 v1, 223, v1')
k('v_subrev_u32 v2, 112, v1')
k('v_cmp_gt_u32 vcc, 112, v1')
k('v_cndmask_b32 v2, v2, v1, vcc')
k('v_lshlrev_b32 v1, 4, v1')
k(f'v_mov_b32 v3, {448 * 16}')
k(f'v_mov_b32 v4, {224 * 16}')
k('v_cndmask_b32 v3, v3, v4, vcc')
k('v_add_u32 v3, v3, v1')
k(f'v_add_u32 v1, {336 * 16}, v1')
k('v_lshrrev_b32 v4, 3, v2')
k('v_lshlrev_b32 v4, 6, v4')
k('v_and_b32 v5, 3, v2')
k('v_lshl_add_u32 v4, v5, 4, v4')
k('v_bfe_u32 v5, v2, 2, 1')
k('v_lshl_add_u32 v4, v5, 3, v4')
k(f'v_mov_b32 v5, {L_VECP + 896}')
k(f'v_mov_b32 v6, {L_VECP}')
k('v_cndmask_b32 v5, v5, v6, vcc')
k('v_add_u32 v4, v4, v5')
k(f's_mov_b32 s{sT1}, {WS_MOD}')
k(f's_mov_b32 s{sCNT}, 0')
k.wait_vm0()
k.raw(f'''L_PM:
    buffer_load_dwordx4 v[{LG}:{LG + 3}], v1, {srd(SWS)}, s{sT1} offen sc1
    buffer_load_dwordx4 v[{LG + 4}:{LG + 7}], v3, {srd(SWS)}, s{sT1} offen sc1
    s_add_u32 s{sCNT}, s{sCNT}, 1
    s_waitcnt vmcnt(0)
    v_cmp_ne_u32 vcc, s{sTAG}, v{LG + 2}
    s_cbranch_vccnz L_PM1
    v_cmp_ne_u32 vcc, s{sTAG}, v{LG + 6}
    s_cbranch_vccz L_PMD
L_PM1:
    s_cmp_lt_u32 s{sCNT}, 0x40000
    s_cbranch_scc1 L_PM
L_PMD:''')
k.assume_vm0()
k(f'ds_write_b64 v4, v[{LG}:{LG + 1}]')
k(f'ds_write_b64 v4, v[{LG + 4}:{LG + 5}] offset:1792')

k('v_and_b32 v1, 15, v0')
k('v_lshlrev_b32 v1, 7, v1')
k(f's_lshl_b32 s{sT0}, s{sH}, 11')
k(f's_add_u32 s{sT0}, s{sT0}, {FGB}')
k(f's_lshl_b32 s{sT1}, s{sH}, 16')
k(f's_lshl_b32 s{sT2}, s{sW}, 10')
k(f's_add_u32 s{sT1}, s{sT1}, s{sT2}')
k(f's_add_u32 s{sT1}, s{sT1}, {WS_KVP}')
poll(2, None, None, 1, sT0)
stamp('kv_flag')
G0 = 120
for p in range(16):
    k(f'buffer_load_dwordx4 {vr(G0 + 4 * p, 4)}, v7, {srd(SWS)}, s{sT1} offen sc1')
    if p < 15:
        k(f's_add_u32 s{sT1}, s{sT1}, 4096')
k('v_bfe_u32 v1, v0, 4, 1')
k('v_lshlrev_b32 v1, 9, v1')
k('v_and_b32 v2, 15, v0')
k('v_lshl_add_u32 v1, v2, 4, v1')
k('v_lshrrev_b32 v2, 5, v0')
k('v_lshl_add_u32 v1, v2, 3, v1')
k(f's_lshl_b32 s{sT2}, s{sW}, 10')
k(f's_add_u32 s{sT2}, s{sT2}, {L_KVF}')
k(f'v_add_u32 v1, s{sT2}, v1')
k(f'v_add_u32 v3, {L_KVF}, v7')
for p in range(16):
    dst = LG if p == 0 else EX
    for q in range(4):
        unpack(dst + 2 * q, dst + 2 * q + 1, G0 + 4 * p + q)
    if p:
        for q in range(4):
            k(f'v_pk_add_f32 {vr(LG + 2 * q, 2)}, {vr(LG + 2 * q, 2)}, {vr(EX + 2 * q, 2)}')
for q in range(4):
    k(f'v_cvt_pk_bf16_f32 v{EX + q}, v{LG + 2 * q}, v{LG + 2 * q + 1}')
for e in range(2):
    k(f'ds_write_b64 v1, {vr(EX + 2 * e, 2)} offset:{256 * e}')
k('v_bfe_u32 v1, v0, 4, 1')
k('v_lshlrev_b32 v1, 14, v1')
k('v_lshl_add_u32 v1, v2, 8, v1')
k('v_and_b32 v4, 15, v0')
k('v_lshl_add_u32 v1, v4, 4, v1')
k(f's_lshl_b32 s{sT1}, s{sRB}, 2')
k(f's_add_u32 s{sT1}, s{sT1}, s{sW}')
k(f's_lshl_b32 s{sT1}, s{sT1}, 15')
k(f's_lshl_b32 s{sT2}, s{sH}, 10')
k(f's_add_u32 s{sT1}, s{sT1}, s{sT2}')
k(f's_add_u32 s{sT1}, s{sT1}, {WS_O}')
k.barrier()
stamp('kv_got')
for x_ in range(4):
    k(f'ds_read_b128 {vr(EX + 4 * x_, 4)}, v3 offset:{1024 * x_}')
for x_ in range(4):
    k(f'v_mfma_f32_32x32x16_bf16 {vr(LG, 16)}, {vr(EX + 4 * x_, 4)}, {vr(PQ[x_], 4)}, '
      + ('0' if x_ == 0 else vr(LG, 16)))
k(f's_lshl_b32 s{sT2}, s{sRB}, 7')
k(f's_lshl_b32 s{sT3}, s{sH}, 2')
k(f's_add_u32 s{sT2}, s{sT2}, s{sT3}')
k(f's_add_u32 s{sT2}, s{sT2}, {FLC}')
k(f's_lshl_b32 s{sT3}, s{sRB}, 4')
k(f's_add_u32 s{sT3}, s{sT3}, s{sH}')
k(f's_lshl_b32 s{sT3}, s{sT3}, 7')
k(f's_add_u32 s{sT3}, s{sT3}, {FGC}')
k(f'v_add_f32 v248, {hex(f2u(1e-6))}, v{LG + 12}')
k('v_mov_b32 v250, v248')
k('v_permlane32_swap_b32 v248, v250')
k('v_rcp_f32 v250, v250')
for q in range(8):
    k(f'v_pk_mul_f32 {vr(LG + 2 * q, 2)}, {vr(LG + 2 * q, 2)}, v[250:251] op_sel_hi:[1,0]')
for q in range(8):
    k(f'v_cvt_pk_bf16_f32 v{EX + q}, v{LG + 2 * q}, v{LG + 2 * q + 1}')
k(f'v_cndmask_b32 v{EX + 6}, v{EX + 6}, 0, s[{sHI}:{sHI + 1}]')
k(f'v_cndmask_b32 v{EX + 7}, v{EX + 7}, 0, s[{sHI}:{sHI + 1}]')
for t in range(2):
    st = k(f'buffer_store_dwordx4 {vr(EX + 4 * t, 4)}, v1, {srd(SWS)}, s{sT1} offen offset:{512 * t} sc1')
publish(st, 2, sT2, sT3)
stamp('o_pub')
finish_early(1)

TA = 8
k('v_lshrrev_b32 v1, 4, v0')
k('v_bfe_u32 v2, v0, 2, 2')
k('v_lshl_add_u32 v2, v1, 2, v2')
k('v_bfe_u32 v3, v2, 1, 2')
k('v_lshlrev_b32 v2, 7, v2')
k('v_lshl_add_u32 v2, v3, 5, v2')
k('v_and_b32 v3, 3, v0')
k(f'v_lshl_add_u32 v{TA}, v3, 3, v2')
for t in range(1, 4):
    k(f'v_xor_b32 v{TA + t}, {32 * t}, v{TA}')

k(f's_lshl_b32 s{sT0}, s{sW}, 5')
k(f'v_xor_b32 v2, s{sT0}, v{TA}')
k(f'v_add_u32 v2, {L_B}, v2')
k('v_bfe_u32 v3, v0, 3, 1')
k('v_xor_b32 v4, 1, v3')
k('v_mul_u32_u24 v4, 896, v4')
k('v_lshl_add_u32 v4, v1, 4, v4')
k(f'v_add_u32 v12, {L_VECP}, v4')
k('v_lshlrev_b32 v4, 5, v1')
k('v_lshl_add_u32 v4, v3, 4, v4')
k(f'v_add_u32 v13, {L_UV}, v4')


def uv_tile(addr, step_stride, rho_stride, woff_sgpr):
    for m in range(14):
        k(f'ds_read_b128 {vr(16 + 4 * m, 4)}, v12 offset:{64 * m}')
        for rho in range(2):
            k(f'ds_read_b64_tr_b16 {vr(72 + 4 * m + 2 * rho, 2)}, v{addr} offset:{step_stride * m + rho_stride * rho}')
    for m in range(14):
        k(f'v_mfma_f32_16x16x32_bf16 {vr(LG, 4)}, {vr(72 + 4 * m, 4)}, {vr(16 + 4 * m, 4)}, '
          + ('0' if m == 0 else vr(LG, 4)))
    k(f'v_add_u32 v4, s{woff_sgpr}, v13')
    k('s_mov_b32 exec_lo, 0x01010101')
    k('s_mov_b32 exec_hi, 0x01010101')
    k(f'ds_write_b128 v4, {vr(LG, 4)}')
    k('s_mov_b64 exec, -1')


k(f's_lshl_b32 s{sT0}, s{sW}, 7')
uv_tile(2, 4096, 2048, sT0)

X1 = 240
k(f's_cmp_lt_u32 s{sCB}, 7')
lab_p2a = k.begin_if('s_cbranch_scc0')
k(f's_lshl_b32 s{sC0}, s{sTB}, 2')
k(f's_add_u32 s{sC0}, s{sC0}, s{sW}')
k('v_and_b32 v2, 15, v0')
k('v_mul_u32_u24 v2, 896, v2')
k('v_lshl_add_u32 v2, v1, 3, v2')
k(f's_mul_i32 s{sT0}, s{sC0}, {16 * 896}')
k(f's_lshl_b32 s{sT1}, s{sCB}, 7')
k(f's_add_u32 s{sT0}, s{sT0}, s{sT1}')
for t in range(4):
    k(f'buffer_load_dwordx2 {vr(X1 + 2 * t, 2)}, v2, {srd(SX)}, s{sT0} offen offset:{32 * t}')
k(f'v_lshl_add_u32 v3, v1, 4, s{sT1}')
k(f'v_add_u32 v3, {L_VECP}, v3')
GA, CBP = 200, 208
for p in range(2):
    k(f'ds_read_b128 {vr(GA + 4 * p, 4)}, v3 offset:{1792 + 64 * p}')
    k(f'ds_read_b128 {vr(CBP + 4 * p, 4)}, v3 offset:{896 + 64 * p}')
k('v_lshrrev_b32 v3, 5, v0')
k('v_lshlrev_b32 v3, 10, v3')
for t in range(4):
    k(f'v_add_u32 v{16 + t}, v3, v{TA + t}')
k('v_and_b32 v3, 15, v0')
k('v_lshlrev_b32 v4, 7, v3')
k('v_lshlrev_b32 v3, 2, v3')
k(f's_lshr_b32 s{sT0}, s{sTB}, 1')
k(f's_lshl_b32 s{sT1}, s{sT0}, 11')
k(f's_add_u32 s{sT1}, s{sT1}, {FGC}')
k(f's_lshl_b32 s{sT0}, s{sT0}, 7')
k(f's_add_u32 s{sT0}, s{sT0}, {FLC}')
k(f's_lshl_b32 s{sT2}, s{sC0}, 14')
k(f's_add_u32 s{sT2}, s{sT2}, {WS_O}')
WB = 96


def wo_reads(h_):
    out = []
    for t in range(4):
        for rho in range(2):
            out.append(f'ds_read_b64_tr_b16 {vr(WB + 16 * (h_ & 3) + 4 * t + 2 * rho, 2)}, '
                       f'v{16 + (t ^ (2 * (h_ & 1)))} offset:{L_A + (28 * h_ + 8 * rho) * 128}')
    return out


for h_ in range(3):
    run(wo_reads(h_))
poll(5, 3, sT0, 4, sT1)
stamp('o_flag')
OA = 32
for h_ in range(16):
    k(f'buffer_load_dwordx4 {vr(OA + 4 * h_, 4)}, v7, {srd(SWS)}, s{sT2} offen offset:{1024 * (h_ & 3)} sc1')
    if h_ & 3 == 3 and h_ < 15:
        k(f's_add_u32 s{sT2}, s{sT2}, 4096')
AC = 160
for h_ in range(16):
    rd = wo_reads(h_ + 3) if h_ + 3 < 16 else []
    for t in range(4):
        k(f'v_mfma_f32_16x16x32_bf16 {vr(AC + 4 * t, 4)}, {vr(WB + 16 * (h_ & 3) + 4 * t, 4)}, {vr(OA + 4 * h_, 4)}, '
          + ('0' if h_ == 0 else vr(AC + 4 * t, 4)))
        run(rd[2 * t:2 * t + 2])
stamp('p2a_gemm')
T1, T2 = 32, 48
for q in range(8):
    unpack(T1 + 2 * q, T1 + 2 * q + 1, X1 + q)
    unpack(T2 + 2 * q, T2 + 2 * q + 1, GA + q)
for q in range(8):
    k(f'v_pk_fma_f32 {vr(T1 + 2 * q, 2)}, {vr(AC + 2 * q, 2)}, {vr(T2 + 2 * q, 2)}, {vr(T1 + 2 * q, 2)}')
for q in range(8):
    k(f'v_cvt_pk_bf16_f32 v{X1 + q}, v{T1 + 2 * q}, v{T1 + 2 * q + 1}')
for q in range(8):
    unpack(T1 + 2 * q, T1 + 2 * q + 1, X1 + q)
    unpack(T2 + 2 * q, T2 + 2 * q + 1, CBP + q)
for q in range(8):
    k(f'v_pk_mul_f32 {vr(T2 + 2 * q, 2)}, {vr(T1 + 2 * q, 2)}, {vr(T2 + 2 * q, 2)}')
for q in range(8):
    k(f'v_cvt_pk_bf16_f32 v{64 + q}, v{T2 + 2 * q}, v{T2 + 2 * q + 1}')
k(f's_mul_i32 s{sT0}, s{sC0}, 14336')
k(f's_lshl_b32 s{sT1}, s{sCB}, 11')
k(f's_add_u32 s{sT0}, s{sT0}, s{sT1}')
k(f's_add_u32 s{sT0}, s{sT0}, {WS_Y}')
for p in range(2):
    k(f'buffer_store_dwordx4 {vr(64 + 4 * p, 4)}, v7, {srd(SWS)}, s{sT0} offen offset:{1024 * p} sc1')
k(f'v_pk_add_f32 v[72:73], {vr(T1, 2)}, {vr(T1 + 2, 2)}')
k(f'v_pk_mul_f32 v[74:75], {vr(T1, 2)}, {vr(T1, 2)}')
for q in range(1, 8):
    if q > 1:
        k(f'v_pk_add_f32 v[72:73], v[72:73], {vr(T1 + 2 * q, 2)}')
    k(f'v_pk_fma_f32 v[74:75], {vr(T1 + 2 * q, 2)}, {vr(T1 + 2 * q, 2)}, v[74:75]')
k('v_add_f32 v72, v72, v73')
k('v_add_f32 v74, v74, v75')
k(f's_lshl_b32 s{sT0}, s{sC0}, 10')
k(f's_lshl_b32 s{sT1}, s{sCB}, 7')
k(f's_add_u32 s{sT0}, s{sT0}, s{sT1}')
k(f's_add_u32 s{sT0}, s{sT0}, {WS_ST1}')
k('v_permlane16_swap_b32 v72, v74')
k('v_add_f32 v72, v72, v74')
k('v_mov_b32 v74, v72')
k('v_lshlrev_b32 v3, 2, v0')
k('v_permlane32_swap_b32 v72, v74')
k('v_add_f32 v72, v72, v74')
k('s_mov_b32 exec_hi, 0')
st = k(f'buffer_store_dword v72, v3, {srd(SWS)}, s{sT0} offen sc1')
k('s_mov_b32 exec_hi, -1')
k(f's_lshl_b32 s{sT2}, s{sTB}, 7')
k(f's_lshl_b32 s{sT3}, s{sCB}, 2')
k(f's_add_u32 s{sT2}, s{sT2}, s{sT3}')
k(f's_add_u32 s{sT2}, s{sT2}, {FLD}')
k(f's_lshl_b32 s{sT3}, s{sTB}, 3')
k(f's_add_u32 s{sT3}, s{sT3}, s{sCB}')
k(f's_lshl_b32 s{sT3}, s{sT3}, 7')
k(f's_add_u32 s{sT3}, s{sT3}, {FGD}')
publish(st, 2, sT2, sT3)
k.end_if(lab_p2a)
k.barrier()
stamp('y_pub')
finish_early(2)

for q in range(3):
    k(f'v_add_u32 v2, {64 * q}, v0')
    k('v_mul_u32_u24 v3, 10923, v2')
    k('v_lshrrev_b32 v3, 16, v3')
    k('v_mul_u32_u24 v4, 6, v3')
    k('v_sub_u32 v4, v2, v4')
    k('v_mul_u32_u24 v3, 3584, v3')
    k(f'v_lshl_add_u32 v{16 + q}, v4, 4, v3')
k(f's_lshr_b32 s{sT0}, s{sH}, 1')
k(f's_mul_i32 s{sT0}, s{sT0}, {7 * 32}')
k(f's_and_b32 s{sT1}, s{sH}, 1')
k(f's_lshl_b32 s{sT1}, s{sT1}, 7')
k(f's_add_u32 s{sT0}, s{sT0}, s{sT1}')
for n in range(4):
    lab = None
    if n == 3:
        k(f's_cmp_lt_u32 s{sW}, 2')
        lab = k.begin_if('s_cbranch_scc0')
    k(f's_add_u32 s{sT1}, s{sW}, {4 * n}')
    k(f's_mul_i32 s{sT2}, s{sT1}, {32 * 3584}')
    k(f's_add_u32 s{sT2}, s{sT2}, s{sT0}')
    k(f's_mul_i32 s{sT1}, s{sT1}, 3072')
    for q in range(3):
        k(f's_add_u32 m0, s{sT1}, {L_A + 1024 * q}')
        tok['win2'] = k(f'buffer_load_dwordx4 v{16 + q}, {srd(SWIN)}, s{sT2} offen lds')
    if lab:
        k.end_if(lab)

k('v_min_u32 v3, 6, v0')
k('v_lshlrev_b32 v4, 7, v3')
k('v_lshlrev_b32 v3, 2, v3')
k(f's_lshl_b32 s{sT0}, s{sRB}, 1')
k(f's_lshr_b32 s{sT1}, s{sW}, 1')
k(f's_add_u32 s{sT0}, s{sT0}, s{sT1}')
k(f's_lshl_b32 s{sT1}, s{sT0}, 10')
k(f's_add_u32 s{sT1}, s{sT1}, {FGD}')
k(f's_lshl_b32 s{sT0}, s{sT0}, 7')
k(f's_add_u32 s{sT0}, s{sT0}, {FLD}')
k(f's_lshl_b32 s{sC0}, s{sRB}, 2')
k(f's_add_u32 s{sC0}, s{sC0}, s{sW}')
k(f's_mul_i32 s{sT2}, s{sC0}, {2 * 14336}')
k(f's_add_u32 s{sT2}, s{sT2}, {WS_Y}')
k(f's_add_u32 s{sT3}, s{sT2}, 14336')
k(f's_lshl_b32 s{sT4}, s{sC0}, 11')
k(f's_add_u32 s{sT4}, s{sT4}, {WS_ST1}')
k('v_lshrrev_b32 v2, 5, v0')
k('v_lshlrev_b32 v2, 10, v2')
k('v_and_b32 v5, 31, v0')
k('v_lshl_add_u32 v2, v5, 2, v2')
for t in range(4):
    k(f'v_add_u32 v{16 + t}, {L_B}, v{TA + t}')
YA = 24
ZA = 136
WB = 192


def w1_reads(m):
    out = []
    for t in range(4):
        for rho in range(2):
            out.append(f'ds_read_b64_tr_b16 {vr(WB + 16 * (m & 1) + 4 * t + 2 * rho, 2)}, v{16 + t} '
                       f'offset:{4096 * m + 2048 * rho}')
    return out


run(w1_reads(0))
poll(5, 3, sT0, 4, sT1)
stamp('y_flag')
for m in range(14):
    k(f'buffer_load_dwordx4 {vr(YA + 8 * m, 4)}, v7, {srd(SWS)}, s{sT2} offen offset:{1024 * (m & 3)} sc1')
    k(f'buffer_load_dwordx4 {vr(YA + 8 * m + 4, 4)}, v7, {srd(SWS)}, s{sT3} offen offset:{1024 * (m & 3)} sc1')
    if m & 3 == 3:
        k(f's_add_u32 s{sT2}, s{sT2}, 4096')
        k(f's_add_u32 s{sT3}, s{sT3}, 4096')
SS = 224
for cb in range(7):
    k(f'buffer_load_dword v{SS + cb}, v2, {srd(SWS)}, s{sT4} offen offset:{128 * cb} sc1')
for m in range(14):
    rd = w1_reads(m + 1) if m + 1 < 14 else []
    for t in range(4):
        for u in range(2):
            k(f'v_mfma_f32_16x16x32_bf16 {vr(ZA + 8 * t + 4 * u, 4)}, {vr(WB + 16 * (m & 1) + 4 * t, 4)}, '
              f'{vr(YA + 8 * m + 4 * u, 4)}, ' + ('0' if m == 0 else vr(ZA + 8 * t + 4 * u, 4)))
            run(rd[2 * t + u:2 * t + u + 1])
stamp('pass1')
k(f'v_add_f32 v{SS}, v{SS}, v{SS + 1}')
for cb in range(2, 7):
    k(f'v_add_f32 v{SS}, v{SS}, v{SS + cb}')
k(f'v_mul_f32 v{SS}, {hex(f2u(1.0 / 448))}, v{SS}')
k(f'v_mov_b32 v{SS + 4}, v{SS}')
k('v_lshrrev_b32 v1, 4, v0')
k('v_lshlrev_b32 v6, 5, v1')
k(f'v_add_u32 v6, {L_UV}, v6')
k(f'v_permlane16_swap_b32 v{SS}, v{SS + 4}')
k(f'v_fma_f32 v{SS + 4}, -v{SS}, v{SS}, v{SS + 4}')
k(f'v_max_f32 v{SS + 4}, 0, v{SS + 4}')
k(f'v_add_f32 v{SS + 4}, {hex(f2u(1e-5))}, v{SS + 4}')
k(f'v_rsq_f32 v{SS + 4}, v{SS + 4}')
k(f'v_mov_b32 v{SS + 2}, v{SS}')
k(f'v_mov_b32 v{SS + 6}, v{SS + 4}')
k(f'v_permlane32_swap_b32 v{SS}, v{SS + 2}')
k(f'v_permlane32_swap_b32 v{SS + 4}, v{SS + 6}')
K1 = 2.0 * math.sqrt(2.0 / math.pi) * LOG2E
k(f's_mov_b32 s{sC0 + 2}, {hex(f2u(-K1 * 0.044715))}')
k(f's_mov_b32 s{sC0 + 3}, {hex(f2u(-K1 * 0.044715))}')
k(f'v_mov_b32 v{SS + 8}, {hex(f2u(-K1))}')


def gelu_tiles(tiles):
    UVB = WB
    for n, t in enumerate(tiles):
        k(f'ds_read_b128 {vr(UVB + 8 * n, 4)}, v6 offset:{128 * t}')
        k(f'ds_read_b128 {vr(UVB + 8 * n + 4, 4)}, v6 offset:{128 * t + 16}')
    for n, t in enumerate(tiles):
        z = ZA + 8 * t
        for u in range(2):
            for q in range(2):
                a = vr(z + 4 * u + 2 * q, 2)
                k(f'v_pk_fma_f32 {a}, {vr(UVB + 8 * n + 2 * q, 2)}, {vr(SS + 2 * u, 2)}, {a} '
                  'op_sel_hi:[1,0,1] neg_lo:[0,1,0] neg_hi:[0,1,0]')
        for u in range(2):
            for q in range(2):
                a = vr(z + 4 * u + 2 * q, 2)
                k(f'v_pk_fma_f32 {a}, {a}, {vr(SS + 4 + 2 * u, 2)}, {vr(UVB + 8 * n + 4 + 2 * q, 2)} op_sel_hi:[1,0,1]')
        e = UVB + 8 * n
        for q in range(4):
            k(f'v_pk_mul_f32 {vr(e + 2 * q, 2)}, {vr(z + 2 * q, 2)}, {vr(z + 2 * q, 2)}')
        for q in range(4):
            k(f'v_pk_fma_f32 {vr(e + 2 * q, 2)}, {vr(e + 2 * q, 2)}, s[{sC0 + 2}:{sC0 + 3}], {vr(SS + 8, 2)} '
              'op_sel_hi:[1,1,0]')
        for q in range(4):
            k(f'v_pk_mul_f32 {vr(e + 2 * q, 2)}, {vr(e + 2 * q, 2)}, {vr(z + 2 * q, 2)}')
        for q in range(8):
            k(f'v_exp_f32 v{e + q}, v{e + q}')
        for q in range(4):
            k(f'v_pk_add_f32 {vr(e + 2 * q, 2)}, {vr(e + 2 * q, 2)}, 1.0 op_sel_hi:[1,0]')
        for q in range(8):
            k(f'v_rcp_f32 v{e + q}, v{e + q}')
        for q in range(4):
            k(f'v_pk_mul_f32 {vr(z + 2 * q, 2)}, {vr(z + 2 * q, 2)}, {vr(e + 2 * q, 2)}')


gelu_tiles([0, 1, 2, 3])
PS = 16
for u in range(2):
    z = ZA + 4 * u
    k(f'v_pk_add_f32 {vr(PS + 2 * u, 2)}, {vr(z, 2)}, {vr(z + 2, 2)}')
    k(f'v_pk_mul_f32 {vr(PS + 4 + 2 * u, 2)}, {vr(z, 2)}, {vr(z, 2)}')
    k(f'v_pk_fma_f32 {vr(PS + 4 + 2 * u, 2)}, {vr(z + 2, 2)}, {vr(z + 2, 2)}, {vr(PS + 4 + 2 * u, 2)}')


def acc_stats(t):
    for u in range(2):
        for q in range(2):
            z = vr(ZA + 8 * t + 4 * u + 2 * q, 2)
            k(f'v_pk_add_f32 {vr(PS + 2 * u, 2)}, {vr(PS + 2 * u, 2)}, {z}')
            k(f'v_pk_fma_f32 {vr(PS + 4 + 2 * u, 2)}, {z}, {z}, {vr(PS + 4 + 2 * u, 2)}')


acc_stats(1)
acc_stats(2)
k(f's_bitcmp0_b32 s{sH}, 0')
lab = k.begin_if('s_cbranch_scc0')
acc_stats(3)
k.end_if(lab)
for q in range(4):
    k(f'v_add_f32 v{PS + 2 * q}, v{PS + 2 * q}, v{PS + 2 * q + 1}')
k(f's_lshl_b32 s{sT3}, s{sC0}, 13')
k(f's_add_u32 s{sT3}, s{sT3}, {WS_ST2}')
k(f's_lshl_b32 s{sT1}, s{sH}, 9')
k(f's_add_u32 s{sT1}, s{sT1}, s{sT3}')
k(f'v_permlane16_swap_b32 v{PS}, v{PS + 2}')
k(f'v_permlane16_swap_b32 v{PS + 4}, v{PS + 6}')
k(f'v_add_f32 v{PS}, v{PS}, v{PS + 2}')
k(f'v_add_f32 v{PS + 4}, v{PS + 4}, v{PS + 6}')
k(f'v_mov_b32 v{PS + 2}, s{sTAG}')
k(f'v_mov_b32 v{PS + 3}, s{sTAG}')
k(f'v_permlane32_swap_b32 v{PS}, v{PS + 4}')
k(f'v_add_f32 v{PS}, v{PS}, v{PS + 4}')
k(f'v_mov_b32 v{PS + 1}, v{PS}')
k(f'v_permlane32_swap_b32 v{PS}, v{PS + 1}')
k('s_mov_b32 exec_hi, 0')
k(f'buffer_store_dwordx4 {vr(PS, 4)}, v7, {srd(SWS)}, s{sT1} offen sc1')
k('s_mov_b32 exec_hi, -1')
stamp('st2_pub')

k.barrier()
k('v_bfe_u32 v2, v0, 2, 2')
k('v_lshl_add_u32 v2, v1, 2, v2')
k('v_mul_u32_u24 v2, 96, v2')
k('v_and_b32 v3, 3, v0')
k('v_lshl_add_u32 v14, v3, 3, v2')


def w2_reads(m):
    out = []
    for t in range(3):
        for rho in range(2):
            out.append(f'ds_read_b64_tr_b16 {vr(WB + 16 * (m & 1) + 4 * t + 2 * rho, 2)}, v14 '
                       f'offset:{L_A + 3072 * m + 1536 * rho + 32 * t}')
    return out


run(w2_reads(0))
for m in range(14):
    rd = w2_reads(m + 1) if m + 1 < 14 else []
    for t in range(3):
        for u in range(2):
            k(f'v_mfma_f32_16x16x32_bf16 {vr(ZA + 8 * (4 + t) + 4 * u, 4)}, {vr(WB + 16 * (m & 1) + 4 * t, 4)}, '
              f'{vr(YA + 8 * m + 4 * u, 4)}, ' + ('0' if m == 0 else vr(ZA + 8 * (4 + t) + 4 * u, 4)))
            run(rd[2 * t + u:2 * t + u + 1])
k(f's_cmp_lt_u32 s{sW}, 3')
lab = k.begin_if('s_cbranch_scc0')
k(f's_lshl_b32 s{sT0}, s{sW}, 5')
k(f'v_add_u32 v2, s{sT0}, v14')
k(f's_lshl_b32 s{sT0}, s{sW}, 7')
k(f's_add_u32 s{sT0}, s{sT0}, 512')
uv_tile(2, 3072, 1536, sT0)
k.end_if(lab)
k.barrier()
stamp('pass2')

k('v_lshrrev_b32 v3, 3, v0')
k('v_and_b32 v4, 7, v0')
k('v_and_b32 v5, 6, v3')
k('v_xor_b32 v4, v4, v5')
k('v_mul_u32_u24 v3, 896, v3')
k('v_lshl_add_u32 v3, v4, 4, v3')
k(f's_mul_i32 s{sT4}, s{sW}, {28 * 8 * 896}')
k(f's_lshl_b32 s{sT5}, s{sCB}, 7')
k(f's_add_u32 s{sT4}, s{sT4}, s{sT5}')
k(f's_mul_i32 m0, s{sW}, {28 * 1024}')
for q in range(28):
    if q:
        k(f's_add_u32 s{sT4}, s{sT4}, {8 * 896}')
        k('s_add_u32 m0, m0, 1024')
    k(f'buffer_load_dwordx4 v3, {srd(SWOUT)}, s{sT4} offen lds')

gelu_tiles([4, 5, 6])
k(f's_lshr_b32 s{sT0}, s{sH}, 1')
k(f's_mul_i32 s{sC0 + 4}, s{sT0}, 7')
k(f's_and_b32 s{sT1}, s{sH}, 1')
k(f's_lshl_b32 s{sT1}, s{sT1}, 2')
k(f's_add_u32 s{sC0 + 4}, s{sC0 + 4}, s{sT1}')
k(f's_mul_i32 s{sT0}, s{sC0}, {2 * 56 * 512}')
k(f's_lshl_b32 s{sT1}, s{sC0 + 4}, 9')
k(f's_add_u32 s{sT0}, s{sT0}, s{sT1}')
k(f's_add_u32 s{sT0}, s{sT0}, {WS_Z1 - 512}')
k(f's_add_u32 s{sT1}, s{sT0}, {56 * 512}')
k('v_lshlrev_b32 v2, 3, v0')
ZP = 24


def z1_store(t):
    for u in range(2):
        z = ZA + 8 * t + 4 * u
        d = ZP + 4 * (t - 3) + 2 * u
        k(f'v_cvt_pk_bf16_f32 v{d}, v{z}, v{z + 1}')
        k(f'v_cvt_pk_bf16_f32 v{d + 1}, v{z + 2}, v{z + 3}')
        k(f'buffer_store_dwordx2 {vr(d, 2)}, v2, {srd(SWS)}, s{sT0 + u} offen offset:{512 * (t - 3)} sc1')


for t in (4, 5, 6):
    z1_store(t)
k(f's_bitcmp1_b32 s{sH}, 0')
lab = k.begin_if('s_cbranch_scc0')
z1_store(3)
k.end_if(lab)
stamp('z1_pub')

GS = 48
k(f's_add_u32 s{sT2}, s{sT3}, 4096')
k(f's_mov_b32 s{sCNT}, 0')
k.wait_vm0()
txt = 'L_PE:\n'
for q in range(8):
    txt += (f'buffer_load_dwordx4 {vr(GS + 4 * q, 4)}, v7, {srd(SWS)}, s{sT3 if q < 4 else sT2} offen '
            f'offset:{1024 * (q & 3)} sc1\n')
txt += f's_add_u32 s{sCNT}, s{sCNT}, 1\ns_waitcnt vmcnt(0)\n'
txt += f'v_xor_b32 v3, s{sTAG}, v{GS + 2}\n'
for q in range(1, 8):
    txt += f'v_xor_b32 v4, s{sTAG}, v{GS + 4 * q + 2}\nv_or_b32 v3, v3, v4\n'
txt += f'''v_cmp_ne_u32 vcc, 0, v3
    s_cbranch_vccz L_PED
    s_cmp_lt_u32 s{sCNT}, 0x40000
    s_cbranch_scc1 L_PE
L_PED:'''
k.raw(txt)
k.assume_vm0()
stamp('st2_got')
for q in range(1, 8):
    k(f'v_pk_add_f32 {vr(GS, 2)}, {vr(GS, 2)}, {vr(GS + 4 * q, 2)}')
k(f'v_permlane32_swap_b32 v{GS}, v{GS + 1}')
k(f'v_add_f32 v{GS}, v{GS}, v{GS + 1}')
k(f'v_mul_f32 v{GS}, {hex(f2u(1.0 / 896))}, v{GS}')
k(f'v_mov_b32 v{GS + 4}, v{GS}')
k(f'v_permlane32_swap_b32 v{GS}, v{GS + 4}')
k(f'v_fma_f32 v{GS + 4}, -v{GS}, v{GS}, v{GS + 4}')
k(f'v_max_f32 v{GS + 4}, 0, v{GS + 4}')
k(f'v_add_f32 v{GS + 4}, {hex(f2u(1e-5))}, v{GS + 4}')
k(f'v_rsq_f32 v{GS + 4}, v{GS + 4}')
k(f'v_mul_f32_e64 v{GS}, -v{GS}, v{GS + 4}')
k(f'v_mov_b32 v{GS + 6}, v{GS + 4}')
k(f'v_mov_b32 v{GS + 2}, v{GS}')
k(f'v_permlane16_swap_b32 v{GS + 4}, v{GS + 6}')
k(f'v_permlane16_swap_b32 v{GS}, v{GS + 2}')
k('v_and_b32 v3, 15, v0')
k(f'v_mul_u32_u24 v3, {PHI_STRIDE}, v3')
k('v_lshl_add_u32 v3, v1, 3, v3')
k(f'v_add_u32 v3, s{sSLOT}, v3')
k('v_bfe_u32 v4, v0, 2, 2')
k('v_lshl_add_u32 v4, v1, 3, v4')
k(f'v_mul_u32_u24 v4, {PHI_STRIDE}, v4')
k('v_and_b32 v5, 3, v0')
k('v_lshl_add_u32 v4, v5, 3, v4')
k(f'v_add_u32 v4, s{sSLOT}, v4')
NP = 64
for t in range(4):
    for u in range(2):
        z = ZA + 8 * t + 4 * u
        for q in range(2):
            k(f'v_pk_fma_f32 {vr(z + 2 * q, 2)}, {vr(z + 2 * q, 2)}, {vr(GS + 4 + 2 * u, 2)}, {vr(GS + 2 * u, 2)} '
              'op_sel_hi:[1,0,0]')
        d = NP + 4 * t + 2 * u
        k(f'v_cvt_pk_bf16_f32 v{d}, v{z}, v{z + 1}')
        k(f'v_cvt_pk_bf16_f32 v{d + 1}, v{z + 2}, v{z + 3}')
for t in range(4):
    for u in range(2):
        k(f'ds_write_b64 v3, {vr(NP + 4 * t + 2 * u, 2)} offset:{16 * u * PHI_STRIDE + 32 * t}')
for t in range(4):
    for rho in range(2):
        k(f'ds_read_b64_tr_b16 {vr(80 + 4 * t + 2 * rho, 2)}, v4 offset:{4 * rho * PHI_STRIDE + 32 * t}')
k(f's_lshl_b32 s{sT0}, s{sC0 + 4}, 16')
k(f's_lshl_b32 s{sT1}, s{sC0}, 10')
k(f's_add_u32 s{sT0}, s{sT0}, s{sT1}')
k(f's_add_u32 s{sT0}, s{sT0}, {WS_Z2}')
for t in range(3):
    st = k(f'buffer_store_dwordx4 {vr(80 + 4 * t, 4)}, v7, {srd(SWS)}, s{sT0} offen sc1')
    k(f's_add_u32 s{sT0}, s{sT0}, 65536')
k(f's_bitcmp0_b32 s{sH}, 0')
lab = k.begin_if('s_cbranch_scc0')
st = k(f'buffer_store_dwordx4 {vr(92, 4)}, v7, {srd(SWS)}, s{sT0} offen sc1')
k.end_if(lab)
k(f's_lshl_b32 s{sT3}, s{sRB}, 4')
k(f's_add_u32 s{sT3}, s{sT3}, s{sH}')
k(f's_lshl_b32 s{sT3}, s{sT3}, 7')
k(f's_add_u32 s{sT3}, s{sT3}, {FGF}')
k.wait_lgkm0()
publish(st, 2, None, sT3)
stamp('z2_pub')
finish_early(3)

k('v_and_b32 v2, 15, v0')
k('v_xor_b32 v3, v2, v1')
k('v_lshlrev_b32 v3, 4, v3')
k('v_lshl_add_u32 v3, v1, 12, v3')
for q in range(4):
    k(f'v_xor_b32 v{16 + q}, {64 * q}, v3')
    if q:
        k(f'v_add_u32 v{16 + q}, {q * 4 * 4096}, v{16 + q}')
k('v_xor_b32 v3, v2, v1')
k('v_lshlrev_b32 v3, 4, v3')
k('v_lshl_add_u32 v3, v2, 8, v3')
for sg in range(4):
    k(f'v_xor_b32 v{20 + sg}, {64 * sg}, v3')
    k(f'v_add_u32 v{20 + sg}, s{sSLOT}, v{20 + sg}')
wtok = {}


def wsp_issue(bt):
    mu, beta = bt >> 2, bt & 3
    k(f's_add_u32 s{sT0}, s{sW}, {mu}')
    k(f's_and_b32 s{sT0}, s{sT0}, 3')
    k(f's_lshl_b32 s{sT1}, s{sTB}, 2')
    k(f's_add_u32 s{sT0}, s{sT0}, s{sT1}')
    k(f's_lshl_b32 s{sT0}, s{sT0}, 16')
    k(f's_lshl_b32 s{sT1}, s{sW}, 10')
    k(f's_add_u32 s{sT0}, s{sT0}, s{sT1}')
    k(f's_add_u32 s{sT0}, s{sT0}, {256 * beta}')
    for q in range(4):
        k(f's_add_u32 m0, s{sSLOT}, {4096 * (bt & 1) + 1024 * q}')
        wtok[bt] = k(f'buffer_load_dwordx4 v{16 + q}, {srd(SWSP)}, s{sT0} offen lds')


def wsp_read(bt):
    mu, beta = bt >> 2, bt & 3
    k.wait_vm(wtok[bt])
    for sg in range(4):
        k(f'ds_read_b128 {ar((mu * 16 + 4 * beta + sg) * 4, 4)}, v{20 + sg} offset:{4096 * (bt & 1)}')
    k.wait_lgkm0()


wsp_issue(0)
wsp_issue(1)
for bt in range(16):
    wsp_read(bt)
    if bt + 2 < 16:
        wsp_issue(bt + 2)
stamp('wsp')

k(f's_lshl_b32 s{sC0}, s{sTB}, 2')
k(f's_add_u32 s{sC0}, s{sC0}, s{sW}')
k('v_lshlrev_b32 v3, 1, v2')
k(f's_lshl_b32 s{sT0}, s{sC0}, 5')
k(f'buffer_load_ushort v15, v3, {srd(SBSP)}, s{sT0} offen')
k('v_bfe_u32 v3, v0, 1, 2')
k('v_lshlrev_b32 v3, 11, v3')
k('v_and_b32 v4, 1, v0')
k('v_lshl_add_u32 v3, v4, 7, v3')
k(f's_lshl_b32 s{sT0}, s{sW}, 13')
k(f's_lshl_b32 s{sT1}, s{sCB}, 8')
k(f's_add_u32 s{sT0}, s{sT0}, s{sT1}')
k(f's_add_u32 s{sT0}, s{sT0}, {FGF}')
sF = sC0 + 2
k(f's_mul_i32 s{sT1}, s{sCB}, 7')
k(f's_and_b32 s{sT2}, s{sCB}, 1')
k(f's_add_u32 s{sF}, s{sT1}, s{sT2}')
for lam in range(1, 6):
    k(f's_add_u32 s{sF + lam}, s{sF}, {lam}')
k(f's_cmp_eq_u32 s{sT2}, 0')
k(f's_cselect_b32 s{sT2}, 6, 0')
k(f's_add_u32 s{sF + 6}, s{sT1}, s{sT2}')
k(f'v_add_u32 v16, s{sSLOT}, v7')
for mu in range(1, 4):
    k(f's_sub_u32 s{sT1}, s{sW}, {mu}')
    k(f's_and_b32 s{sT1}, s{sT1}, 3')
    k(f's_lshl_b32 s{sT1}, s{sT1}, 13')
    k(f's_add_u32 s{sT1}, s{sT1}, {L_SLOT + 1024 * mu}')
    k(f'v_add_u32 v{16 + mu}, s{sT1}, v7')
k('v_lshlrev_b32 v20, 3, v0')
sZB, sZ1, sUB, sLD = sC0 + 10, sC0 + 11, sC0 + 12, sC0 + 13
k(f's_lshl_b32 s{sZB}, s{sW}, 14')
k(f's_add_u32 s{sZB}, s{sZB}, {WS_Z2}')
k(f's_mul_i32 s{sZ1}, s{sC0}, {56 * 512}')
k(f's_add_u32 s{sZ1}, s{sZ1}, {WS_Z1}')
k(f's_mul_i32 s{sUB}, s{sC0}, {28 * 1024}')
k(f's_add_u32 s{sUB}, s{sUB}, {WS_U}')
poll(5, None, None, 3, sT0)
k('v_lshlrev_b32 v14, 16, v15')
stamp('z2_flag')
NB = 16
BR = 64
PA = 128
RD = 160
Z1R = 172
UP = 188
LOOK = 12


def b_load(n):
    lam, s = n >> 4, n & 15
    if s == 0:
        k(f's_lshl_b32 s{sLD}, s{sF + lam}, 16')
        k(f's_add_u32 s{sLD}, s{sLD}, s{sZB}')
    elif s & 3 == 0:
        k(f's_add_u32 s{sLD}, s{sLD}, 4096')
    k(f'buffer_load_dwordx4 {vr(BR + 4 * (n % NB), 4)}, v7, {srd(SWS)}, s{sLD} offen offset:{1024 * (s & 3)} sc1')


ust = [None]


def finalize(lam):
    a = PA + 16 * (lam & 1)
    it = []
    it.append('\n'.join(f'ds_read_b128 {vr(RD + 4 * (mu - 1), 4)}, v{16 + mu} offset:{4096 * (lam & 1)}'
                        for mu in range(1, 4)))
    z = Z1R + 2 * lam
    it += [f'v_lshlrev_b32 v192, 16, v{z}', f'v_and_b32 v193, 0xffff0000, v{z}',
           f'v_lshlrev_b32 v194, 16, v{z + 1}', f'v_and_b32 v195, 0xffff0000, v{z + 1}']
    for q in range(4):
        it.append(f'v_add_f32 v{a + q}, v14, v{a + q}')
    for mu in range(3):
        for q in range(4):
            it.append(f'v_add_f32 v{a + q}, v{a + q}, v{RD + 4 * mu + q}')
    for q in range(4):
        it.append(f'v_mul_f32 v{a + q}, v{a + q}, v{192 + q}')
    d = UP + 2 * (lam & 1)
    it += [f'v_cvt_pk_bf16_f32 v{d}, v{a}, v{a + 1}', f'v_cvt_pk_bf16_f32 v{d + 1}, v{a + 2}, v{a + 3}']

    def st_():
        k(f's_lshr_b32 s{sT0}, s{sF + lam}, 1')
        k(f's_lshl_b32 s{sT0}, s{sT0}, 10')
        k(f's_add_u32 s{sT0}, s{sT0}, s{sUB}')
        if lam == 6:
            k(f's_and_b32 s{sT1}, s{sCB}, 1')
            k(f's_lshl_b32 s{sT1}, s{sT1}, 3')
            k(f's_add_u32 s{sT0}, s{sT0}, s{sT1}')
            ust[0] = k(f'buffer_store_dwordx2 {vr(UP, 2)}, v7, {srd(SWS)}, s{sT0} offen sc1')
        else:
            ust[0] = k(f'buffer_store_dwordx4 {vr(UP, 4)}, v7, {srd(SWS)}, s{sT0} offen sc1')
    if lam & 1 or lam == 6:
        it.append(st_)
    return it


def z1_loads():
    for lam in range(7):
        k(f's_lshl_b32 s{sT0}, s{sF + lam}, 9')
        k(f's_add_u32 s{sT0}, s{sT0}, s{sZ1}')
        k(f'buffer_load_dwordx2 {vr(Z1R + 2 * lam, 2)}, v20, {srd(SWS)}, s{sT0} offen sc1')


def spill(lam):
    a = PA + 16 * (lam & 1)
    return '\n'.join(f'ds_write_b128 v16, {vr(a + 4 * mu, 4)} offset:{4096 * (lam & 1) + 1024 * mu}'
                     for mu in range(1, 4))


for n in range(LOOK):
    b_load(n)
for lam in range(7):
    a = PA + 16 * (lam & 1)
    side = []
    for s in range(16):
        n = 16 * lam + s
        if lam > 0:
            if s == 2:
                k(spill(lam - 1))
            if s == 4:
                k.barrier()
                if lam == 1:
                    z1_loads()
            if s == (10 if lam == 1 else 5):
                side = finalize(lam - 1)
        for mu in range(4):
            k(f'v_mfma_f32_16x16x32_bf16 {vr(a + 4 * mu, 4)}, {vr(BR + 4 * (n % NB), 4)}, '
              f'{ar((mu * 16 + s) * 4, 4)}, ' + ('0' if s == 0 else vr(a + 4 * mu, 4)))
            if mu == 0 and n + LOOK < 112:
                b_load(n + LOOK)
            elif side:
                run(side[:2])
                side = side[2:]
    run(side)
stamp('p3_gemm')
k(spill(6))
k.barrier()
run(finalize(6))
k(f's_lshl_b32 s{sT2}, s{sTB}, 7')
k(f's_add_u32 s{sT4}, s{sT2}, {FLG}')
k(f's_lshl_b32 s{sT3}, s{sCB}, 2')
k(f's_add_u32 s{sT2}, s{sT4}, s{sT3}')
k(f's_lshl_b32 s{sT5}, s{sTB}, 10')
k(f's_add_u32 s{sT5}, s{sT5}, {FGG}')
k(f's_lshl_b32 s{sT3}, s{sCB}, 7')
k(f's_add_u32 s{sT3}, s{sT3}, s{sT5}')
publish(ust[0], 2, sT2, sT3)
stamp('u_pub')
k(f's_or_b32 s{sT0}, s2, s{sW}')
k(f's_cmp_eq_u32 s{sT0}, 0')
lab = k.begin_if('s_cbranch_scc0')
k(f'v_mov_b32 v2, s{sTAG}')
k('s_mov_b64 exec, 1')
k(f'buffer_store_dword v2, off, {srd(SWS)}, 0 sc1')
k('s_mov_b64 exec, -1')
k.end_if(lab)
finish_early(4)

k(f's_cmp_lt_u32 s{sCB}, 7')
lab_p4 = k.begin_if('s_cbranch_scc0')
k('v_and_b32 v3, 7, v0')
k('v_lshlrev_b32 v4, 7, v3')
k('v_lshlrev_b32 v3, 2, v3')
for t in range(4):
    k(f'v_add_u32 v{12 + t}, 57344, v{TA + t}')
k(f's_lshl_b32 s{sT1}, s{sCB}, 7')
k(f'v_lshl_add_u32 v2, v1, 4, s{sT1}')
k(f'v_add_u32 v2, {L_VECP}, v2')
GB = 232
for p in range(2):
    k(f'ds_read_b128 {vr(GB + 4 * p, 4)}, v2 offset:{2688 + 64 * p}')
UA = 16
WB = 128
AC = 192


def wout_reads(m):
    out = []
    for t in range(4):
        for rho in range(2):
            out.append(f'ds_read_b64_tr_b16 {vr(WB + 16 * (m & 3) + 4 * t + 2 * rho, 2)}, '
                       f'v{(TA if m < 14 else 12) + t} offset:{4096 * (m % 14) + 2048 * rho}')
    return out


for m in range(3):
    run(wout_reads(m))
poll(5, 3, sT4, 4, sT5)
stamp('u_flag')
for m in range(28):
    k(f'buffer_load_dwordx4 {vr(UA + 4 * m, 4)}, v7, {srd(SWS)}, s{sUB} offen offset:{1024 * (m & 3)} sc1')
    if m & 3 == 3 and m < 27:
        k(f's_add_u32 s{sUB}, s{sUB}, 4096')
k('v_and_b32 v2, 15, v0')
k('v_mul_u32_u24 v2, 896, v2')
k('v_bfe_u32 v3, v0, 4, 1')
k('v_lshl_add_u32 v2, v3, 5, v2')
k('v_lshrrev_b32 v3, 5, v0')
k('v_lshl_add_u32 v2, v3, 4, v2')
k(f's_mul_i32 s{sT0}, s{sC0}, {16 * 896}')
k(f's_add_u32 s{sT0}, s{sT0}, s{sT1}')
for q in range(8):
    unpack(208 + 2 * q, 209 + 2 * q, GB + q)
for m in range(28):
    rd = wout_reads(m + 3) if m + 3 < 28 else []
    for t in range(4):
        k(f'v_mfma_f32_16x16x32_bf16 {vr(AC + 4 * t, 4)}, {vr(WB + 16 * (m & 3) + 4 * t, 4)}, {vr(UA + 4 * m, 4)}, '
          + ('0' if m == 0 else vr(AC + 4 * t, 4)))
        run(rd[2 * t:2 * t + 2])
stamp('p4_gemm')
for q in range(8):
    unpack(224 + 2 * q, 225 + 2 * q, X1 + q)
for q in range(8):
    k(f'v_pk_fma_f32 {vr(224 + 2 * q, 2)}, {vr(AC + 2 * q, 2)}, {vr(208 + 2 * q, 2)}, {vr(224 + 2 * q, 2)}')
for q in range(8):
    k(f'v_cvt_pk_bf16_f32 v{16 + q}, v{224 + 2 * q}, v{225 + 2 * q}')
for p in range(2):
    k(f'v_permlane16_swap_b32 v{16 + 4 * p}, v{18 + 4 * p}')
    k(f'v_permlane16_swap_b32 v{17 + 4 * p}, v{19 + 4 * p}')
for p in range(2):
    k(f'buffer_store_dwordx4 {vr(16 + 4 * p, 4)}, v2, {srd(SOUT)}, s{sT0} offen offset:{64 * p}')
k.end_if(lab_p4)
k('L_END:')
if PROF:
    stamp('end')
    k.wait_vm0()
    stamp('drained')
    k(f's_lshl_b32 s{sT0}, s2, 2')
    k(f's_add_u32 s{sT0}, s{sT0}, s{sW}')
    k(f's_lshl_b32 s{sT0}, s{sT0}, 8')
    k(f's_add_u32 s{sT0}, s{sT0}, {WS_DBG}')
    k('v_lshlrev_b32 v2, 2, v0')
    k(f'buffer_store_dword v255, v2, {srd(SWS)}, s{sT0} offen')
k('L_EXIT:')
k('s_endpgm')
k('L_CODE_END:')

body = k.finish()
if os.environ.get('CENSUS'):
    from collections import Counter
    c = Counter()
    for i in k.ins + [None]:
        if i is None or (i.kind == 'pseudo' and i.mn == '@mark'):
            cyc = 4 * sum(c.values()) + 4 * (c['trans'] + c['m16'] + c['m32'])
            mat = 16 * c['m16'] + 32 * c['m32']
            print(f"{(i.tok if i else 'END'):10s} issue {cyc:5d} matrix {mat:5d} | " + ' '.join(f'{a}={b}' for a, b in sorted(c.items())))
            c = Counter()
        elif i.kind != 'pseudo':
            kind = i.kind
            if kind == 'mfma':
                kind = 'm32' if i.passes == 8 else 'm16'
            if i.mn == 's_nop':
                c['nop'] += i.states()
            elif i.mn == 's_waitcnt':
                c['wait'] += 1
            else:
                c[kind] += 1
ref = open(os.path.join(os.path.dirname(os.path.abspath(__file__)), '..', 'cdna_kernels', NAME + '.s.ref')).read()
head = ref[:ref.index('; Override launch geometry')]
out = head + f'''; One persistent launch: 256 workgroups (one per CU) x 4 waves; phases hand data over through d_ws with tagged flags.
; @launch grid=(256,1,1) block=(256,1,1) lds={LDS_BYTES}
.amdgcn_target "amdgcn-amd-amdhsa--gfx950"
.text
.globl {NAME}_kernel
.p2align 8
.type {NAME}_kernel,@function
{NAME}_kernel:
''' + body + f'''.section .rodata,"a"
.p2align 6
.amdhsa_kernel {NAME}_kernel
  .amdhsa_next_free_vgpr 512
  .amdhsa_next_free_sgpr 100
  .amdhsa_accum_offset 256
  .amdhsa_group_segment_fixed_size 0
  .amdhsa_kernarg_size 112
  .amdhsa_user_sgpr_count 2
  .amdhsa_user_sgpr_kernarg_segment_ptr 1
  .amdhsa_system_sgpr_workgroup_id_x 1
  .amdhsa_float_denorm_mode_32 3
.end_amdhsa_kernel
'''
dst = sys.argv[1] if len(sys.argv) > 1 else os.path.join(os.path.dirname(os.path.abspath(__file__)), '..',
                                                       'cdna_kernels', NAME + '.s')
open(dst, 'w').write(out)
if PROF:
    open(dst + '.stamps', 'w').write('\n'.join(stamp_names))
print('wrote', dst, 'instructions:', sum(1 for i in k.ins if i.kind != 'pseudo'))
```
